```python
import torch

def _softmax(x, axis=-1):
    return torch.softmax(x, dim=axis)
def _gelu(x):
    return torch.nn.functional.gelu(x, approximate="tanh")
def _silu(x):
    return torch.nn.functional.silu(x)
def _sigmoid(x):
    return torch.sigmoid(x)
def _layernorm(x, axis=-1, eps=1e-5):
    m = x.mean(dim=axis, keepdim=True)
    v = x.var(dim=axis, keepdim=True, unbiased=False)
    return (x - m) / torch.sqrt(v + eps)
def _scatter_add(tgt, idx, src, axis=0):
    return tgt.clone().index_add_(axis, idx, src)
def _segment_sum(src, seg, n):
    out = torch.zeros((n,) + src.shape[1:], dtype=src.dtype)
    return out.index_add_(0, seg, src)
def _pad(x, pw):
    flat = tuple(v for pair in reversed(pw) for v in pair)
    return torch.nn.functional.pad(x, flat)

kernel_name = 'standalone__glu_gated_glu__prompt'

def setup_inputs():

    _w = (lambda a: (lambda t: t.to(torch.bfloat16) if t.is_floating_point() else t)(torch.as_tensor(a)))
    B, S, D, F = 1, 2048, 640, 1536
    return {
        "x": _w((lambda *s: torch.randn(*s, dtype=torch.bfloat16) * 0.2)(B, S, D)),
        "w_gate": _w((lambda *s: torch.randn(*s, dtype=torch.bfloat16) * 0.2)(D, F)),
        "w_up": _w((lambda *s: torch.randn(*s, dtype=torch.bfloat16) * 0.05)(D, F)),
        "w_down": _w((lambda *s: torch.randn(*s, dtype=torch.bfloat16) * 0.05)(F, D)),
    }

def reference(x, w_gate, w_up, w_down):
    g = torch.einsum("bsd,df->bsf", x, w_gate)
    u = torch.einsum("bsd,df->bsf", x, w_up)
    h = _sigmoid(g) * u
    return torch.einsum("bsf,fd->bsd", h, w_down)
```

```python
import sys, argparse
ap = argparse.ArgumentParser()
ap.add_argument("--stamps", action="store_true")
args = ap.parse_args()
STAMPS = args.stamps

out = []
def A(s):
    for l in s.split("\n"):
        out.append("    " + l if l and not l.endswith(":") and not l.startswith(".") and not l.startswith(";") else l)

HDR = open("standalone__glu_gated_glu__prompt.s.ref").read().split("\n")
for l in HDR[:8]:
    out.append(l)
K1 = "glu_gemm1_kernel"
K2 = "glu_gemm2_kernel"
out.append(f"; @launch kernel={K1} grid=(256,1,1) block=(512,1,1) lds=163840")
out.append(f"; @launch kernel={K2} grid=(256,1,1) block=(256,1,1) lds=61440")
A('.amdgcn_target "amdgcn-amd-amdhsa--gfx950"')
A(".text")

WDP_OFF = 0x800000
STAMP_OFF = 192 << 20
STG = 40960

def srd(r, lo, hi, size):
    A(f"s_mov_b32 s{r}, s{lo}\ns_mov_b32 s{r+1}, s{hi}\ns_mov_b32 s{r+2}, {size}\ns_mov_b32 s{r+3}, 0x20000")

def stamp(i):
    if STAMPS:
        A(f"s_memrealtime s[{60+2*i}:{61+2*i}]")

def store_stamps(n, base, wave_sreg, wavesel, label, vt=200, srdws=32):
    if not STAMPS:
        return
    A("s_waitcnt lgkmcnt(0)")
    A(f"s_cmp_lg_u32 s{wave_sreg}, {wavesel}\ns_cbranch_scc1 {label}")
    for i in range(n):
        A(f"v_mov_b32 v{vt+2*i}, s{60+2*i}\nv_mov_b32 v{vt+2*i+1}, s{61+2*i}")
    A(f"s_lshl_b32 s58, s2, 6\ns_add_u32 s58, s58, {base}\nv_mov_b32 v{vt+16}, s58")
    A(f"s_mov_b64 exec, 1")
    for i in range(n):
        A(f"buffer_store_dwordx2 v[{vt+2*i}:{vt+2*i+1}], v{vt+16}, s[{srdws}:{srdws+3}], 0 offen offset:{8*i}")
    A(f"{label}:")

A(f".globl {K1}\n.p2align 8\n.type {K1},@function\n{K1}:")
A("s_cmp_ge_u32 s2, 256\ns_cbranch_scc1 K1_end")
stamp(0)
A("s_load_dwordx4 s[4:7], s[0:1], 0")
A("s_load_dwordx4 s[8:11], s[0:1], 16")
A("s_load_dwordx2 s[12:13], s[0:1], 48")
A("v_and_b32 v1, 63, v0\nv_lshrrev_b32 v2, 6, v0")
A("s_and_b32 s40, s2, 7\ns_lshr_b32 s41, s2, 3")
A("v_readfirstlane_b32 s38, v2")
A("s_and_b32 s36, s40, 1\ns_lshl_b32 s36, s36, 3\ns_and_b32 s42, s41, 7\ns_add_u32 s36, s36, s42")
A("s_lshr_b32 s37, s40, 1\ns_lshl_b32 s37, s37, 2\ns_lshr_b32 s42, s41, 3\ns_add_u32 s37, s37, s42")
A("s_waitcnt lgkmcnt(0)")
srd(16, 4, 5, 2621440)
srd(20, 6, 7, 1966080)
srd(24, 8, 9, 1966080)
srd(28, 10, 11, 1966080)
srd(32, 12, 13, 0x10000000)
A("s_cmp_ge_u32 s38, 4\ns_cbranch_scc1 K1_loader")

A("s_and_b32 s40, s38, 1\ns_lshr_b32 s41, s38, 1")
VX = 2
VW = 10
XF = 16
WF = 32
ACC = 64
A("v_and_b32 v160, 31, v1")
A("s_lshl_b32 s42, s40, 6\nv_add_u32 v160, s42, v160\nv_lshlrev_b32 v160, 7, v160")
A("v_lshrrev_b32 v161, 5, v1\nv_bfe_u32 v162, v1, 1, 3\nv_xor_b32 v161, v161, v162")
for ks in range(4):
    A(f"v_xor_b32 v162, {2*ks}, v161\nv_lshlrev_b32 v162, 4, v162\nv_add_u32 v{VX+ks}, v160, v162\nv_add_u32 v{VX+4+ks}, {2*STG}, v{VX+ks}")
A("v_bfe_u32 v160, v1, 4, 1")
A("v_lshrrev_b32 v161, 5, v1")
A("v_bfe_u32 v162, v1, 2, 2")
A("v_and_b32 v163, 3, v1")
A("v_lshlrev_b32 v161, 3, v161\nv_add_u32 v161, v161, v162\nv_mul_u32_u24 v161, 192, v161")
A("v_mul_u32_u24 v164, 12288, v160\nv_add_u32 v161, v161, v164\nv_lshlrev_b32 v163, 3, v163\nv_add_u32 v161, v161, v163")
A("v_add_u32 v161, 16384, v161")
A("s_mul_i32 s42, s41, 3")
for t in range(3):
    A(f"s_add_u32 s43, s42, {t}\nv_xor_b32 v162, s43, v160\nv_lshlrev_b32 v162, 5, v162\nv_add_u32 v{VW+t}, v161, v162\nv_add_u32 v{VW+3+t}, {2*STG}, v{VW+t}")
A("v_bfe_u32 v160, v1, 4, 1\nv_mul_u32_u24 v160, 49152, v160\nv_lshrrev_b32 v161, 5, v1\nv_lshlrev_b32 v161, 8, v161\nv_add_u32 v160, v160, v161")
A("v_and_b32 v161, 15, v1\nv_lshlrev_b32 v161, 4, v161\nv_add_u32 v56, v160, v161")
A("s_lshl_b32 s44, s36, 3\ns_lshl_b32 s45, s40, 2\ns_add_u32 s44, s44, s45\ns_mul_i32 s44, s44, 49152")
A("s_mul_i32 s45, s37, 6\ns_add_u32 s45, s45, s42\ns_lshl_b32 s45, s45, 9\ns_add_u32 s44, s44, s45\ns_add_u32 s45, s44, 98304")

def reads(s):
    c, ks = s >> 2, s & 3
    st = c & 3
    hi = 1 if st >= 2 else 0
    so = (st & 1) * STG
    b = s & 1
    r = []
    for t in range(3):
        for rr in range(2):
            d = WF + 12*b + 4*t + 2*rr
            r.append(f"ds_read_b64_tr_b16 v[{d}:{d+1}], v{VW+3*hi+t} offset:{so + 3072*ks + 768*rr}")
        if t < 2:
            mi = t
            d = XF + 8*b + 4*mi
            r.append(f"ds_read_b128 v[{d}:{d+3}], v{VX+4*hi+ks} offset:{so + 4096*mi}")
    return r

def mfmas(s):
    b = s & 1
    m = []
    for t in range(3):
        for mi in range(2):
            a = ACC + 16*(3*mi + t)
            wa = WF + 12*b + 4*t
            xa = XF + 8*b + 4*mi
            c = "0" if s == 0 else f"v[{a}:{a+15}]"
            m.append(f"v_mfma_f32_32x32x16_bf16 v[{a}:{a+15}], v[{wa}:{wa+3}], v[{xa}:{xa+3}], {c}")
    return m

A("s_barrier")
stamp(1)
for r in reads(0):
    A(r)
for s in range(40):
    A("s_waitcnt lgkmcnt(0)")
    m = mfmas(s)
    nxt = reads(s + 1) if s + 1 < 40 else []
    if (s & 3) == 3 and s + 1 < 40:
        A(m[0]); A(m[1])
        A("s_barrier")
        seq = [m[2]] + nxt[0:3] + [m[3]] + nxt[3:6] + [m[4]] + nxt[6:8] + [m[5]]
    else:
        seq = [m[0]] + nxt[0:2] + [m[1]] + nxt[2:4] + [m[2]] + nxt[4:6] + [m[3]] + nxt[6:8] + [m[4], m[5]]
    for x in seq:
        A(x)
stamp(2)
A("s_nop 15")
T = 160
for mi in range(2):
    for t in range(3):
        a = ACC + 16*(3*mi + t)
        o = 16 + 4*(3*mi + t)
        for j in range(8): A(f"v_mul_f32 v{T+j}, 0xbfb8aa3b, v{a+j}")
        for j in range(8): A(f"v_exp_f32 v{T+j}, v{T+j}")
        for j in range(8): A(f"v_add_f32 v{T+j}, 1.0, v{T+j}")
        for j in range(8): A(f"v_rcp_f32 v{T+j}, v{T+j}")
        for j in range(8): A(f"v_mul_f32 v{T+j}, v{T+j}, v{a+8+j}")
        for j in range(4): A(f"v_cvt_pk_bf16_f32 v{o+j}, v{T+2*j}, v{T+2*j+1}")
        A(f"buffer_store_dwordx4 v[{o}:{o+3}], v56, s[32:35], s{44+mi} offen offset:{512*t}")
stamp(3)
if STAMPS:
    A("s_waitcnt vmcnt(0)")
stamp(4)
store_stamps(5, STAMP_OFF, 38, 0, "K1_st0")
A("s_endpgm")

A("K1_loader:")
A("s_sub_u32 s39, s38, 4")
A("s_cmp_ge_u32 s2, 240\ns_cselect_b32 s40, 16, 0\ns_sub_u32 s40, s2, s40")
A("s_mul_i32 s41, s40, 205\ns_lshr_b32 s41, s41, 10")
A("s_mul_i32 s42, s41, 5\ns_sub_u32 s42, s40, s42")
A("s_mul_i32 s43, s41, 32*1280\ns_lshl_b32 s44, s42, 8\ns_add_u32 s43, s43, s44\ns_lshl_b32 s44, s39, 6\ns_add_u32 s43, s43, s44")
A("v_lshrrev_b32 v3, 2, v1\nv_mul_u32_u24 v3, 1280, v3\nv_and_b32 v4, 3, v1\nv_lshlrev_b32 v4, 4, v4\nv_add_u32 v3, v3, v4\nv_add_u32 v20, s43, v3")
A(f"v_add_u32 v21, {16*1280 - 1024}, v20")
A(f"s_lshl_b32 s45, s39, 11\ns_add_u32 s45, s45, {3*STG}\ns_mov_b32 m0, s45\ns_nop 0")
A("buffer_load_dwordx4 v20, s[28:31], 0 offen lds\nbuffer_load_dwordx4 v21, s[28:31], 0 offen offset:1024 lds")
A("v_lshrrev_b32 v3, 3, v1\nv_and_b32 v4, 7, v1\nv_lshrrev_b32 v5, 4, v1\nv_xor_b32 v6, v4, v5\nv_xor_b32 v7, 4, v6")
A("s_lshl_b32 s46, s36, 7\ns_lshl_b32 s47, s39, 5\ns_add_u32 s46, s46, s47\ns_mul_i32 s46, s46, 1280")
A("v_mul_u32_u24 v8, 1280, v3\nv_add_u32 v8, s46, v8")
for j in range(4):
    src = "v6" if j % 2 == 0 else "v7"
    A(f"v_lshlrev_b32 v9, 4, {src}\nv_add_u32 v{10+j}, v8, v9")
    if j: A(f"v_add_u32 v{10+j}, {j*10240 - j*1024}, v{10+j}")
A("s_mul_i32 s46, s37, 192\ns_mul_i32 s47, s39, 16*3072\ns_add_u32 s46, s46, s47")
for j in range(3):
    A(f"v_add_u32 v3, {64*j}, v1\nv_mul_u32_u24 v4, 171, v3\nv_lshrrev_b32 v4, 11, v4")
    A("v_mul_u32_u24 v5, 12, v4\nv_sub_u32 v5, v3, v5")
    A("v_mul_u32_u24 v6, 3072, v4\nv_add_u32 v6, s46, v6")
    if j: A(f"v_subrev_u32 v6, {1024*j}, v6")
    A(f"v_lshlrev_b32 v7, 4, v5\nv_add_u32 v{14+j}, v6, v7")
    A(f"v_xor_b32 v7, 32, v7\nv_add_u32 v{17+j}, v6, v7")
A("s_lshl_b32 s48, s39, 12")
A("s_mul_i32 s49, s39, 3072\ns_add_u32 s49, s49, 16384")
A("s_add_u32 s50, s49, 12288")
def issue(kc):
    st = (kc % 4) * STG
    A(f"s_mov_b32 s51, {kc*128}\ns_mov_b32 s52, {kc*64*3072}")
    A(f"s_add_u32 m0, s48, {st}\ns_nop 0")
    for j in range(4):
        A(f"buffer_load_dwordx4 v{10+j}, s[16:19], s51 offen offset:{1024*j} lds")
    A(f"s_add_u32 m0, s49, {st}\ns_nop 0")
    for j in range(3):
        A(f"buffer_load_dwordx4 v{14+j}, s[20:23], s52 offen offset:{1024*j} lds")
    A(f"s_add_u32 m0, s50, {st}\ns_nop 0")
    for j in range(3):
        A(f"buffer_load_dwordx4 v{17+j}, s[24:27], s52 offen offset:{1024*j} lds")
for kc in range(3):
    issue(kc)
A("v_lshrrev_b32 v3, 5, v1\nv_lshlrev_b32 v3, 4, v3")
A("v_bfe_u32 v4, v1, 4, 1\nv_lshlrev_b32 v4, 2, v4\nv_add_u32 v3, v3, v4")
A("v_bfe_u32 v4, v1, 2, 2\nv_add_u32 v3, v3, v4\nv_lshlrev_b32 v3, 6, v3")
A("v_and_b32 v4, 3, v1\nv_lshlrev_b32 v4, 3, v4\nv_add_u32 v3, v3, v4\nv_add_u32 v22, s45, v3")
A("v_lshlrev_b32 v23, 4, v1")
A("s_lshl_b32 s46, s42, 3\ns_lshl_b32 s47, s39, 1\ns_add_u32 s46, s46, s47")
for c2 in range(2):
    A(f"s_add_u32 s47, s46, {c2}\ns_mul_i32 s53, s47, 205\ns_lshr_b32 s53, s53, 10")
    A("s_mul_i32 s54, s53, 5\ns_sub_u32 s54, s47, s54")
    A("s_mul_i32 s53, s53, 48\ns_add_u32 s53, s53, s41\ns_mul_i32 s53, s53, 5\ns_add_u32 s53, s53, s54")
    A(f"s_lshl_b32 s53, s53, 10\ns_add_u32 s{55+c2}, s53, {WDP_OFF}")
A("s_waitcnt vmcnt(30)")
for c2 in range(2):
    for rr in range(2):
        A(f"ds_read_b64_tr_b16 v[{24+4*c2+2*rr}:{25+4*c2+2*rr}], v22 offset:{32*c2 + 512*rr}")
A("s_waitcnt lgkmcnt(0)")
for c2 in range(2):
    A(f"buffer_store_dwordx4 v[{24+4*c2}:{27+4*c2}], v23, s[32:35], s{55+c2} offen")
for c in range(10):
    issued_upto = min(9, c + 2)
    n = 10 * (issued_upto - c) + (2 if c <= 2 else 0)
    A(f"s_waitcnt vmcnt({n})")
    A("s_barrier")
    if c + 3 <= 9:
        issue(c + 3)
A("K1_end:")
A("s_endpgm")

A(f".globl {K2}\n.p2align 8\n.type {K2},@function\n{K2}:")
A("s_cmp_ge_u32 s2, 256\ns_cbranch_scc1 K2_end")
stamp(0)
A("s_load_dwordx2 s[4:5], s[0:1], 32")
A("s_load_dwordx2 s[12:13], s[0:1], 48")
A("v_and_b32 v1, 63, v0\nv_lshrrev_b32 v2, 6, v0")
A("s_and_b32 s40, s2, 7\ns_lshr_b32 s41, s2, 3")
A("v_readfirstlane_b32 s38, v2")
A("s_and_b32 s36, s40, 3\ns_lshl_b32 s36, s36, 3\ns_and_b32 s42, s41, 7\ns_add_u32 s36, s36, s42")
A("s_lshr_b32 s37, s40, 2\ns_lshl_b32 s37, s37, 2\ns_lshr_b32 s42, s41, 3\ns_add_u32 s37, s37, s42")
A("v_lshlrev_b32 v0, 4, v1")
A("s_lshl_b32 s42, s36, 2\ns_mul_i32 s42, s42, 48\ns_mul_i32 s43, s38, 12\ns_add_u32 s42, s42, s43\ns_lshl_b32 s42, s42, 10")
A("v_add_u32 v2, s42, v0\nv_add_u32 v3, 49152, v2")
A("s_mul_i32 s48, s37, 48\ns_add_u32 s48, s48, s43\ns_mul_i32 s48, s48, 5120")
A(f"s_add_u32 s48, s48, {WDP_OFF}")
A("s_waitcnt lgkmcnt(0)")
srd(16, 4, 5, 2621440)
srd(32, 12, 13, 0x10000000)
NB = 7
FR = 4
def k2_issue(i):
    b = FR + 36 * (i % NB)
    A(f"s_mov_b32 s50, {1024*(i & ~3)}\ns_add_u32 s51, s50, 98304\ns_add_u32 s52, s48, {5120*i}\ns_add_u32 s53, s52, 4096")
    for j in range(5):
        if j < 4:
            A(f"buffer_load_dwordx4 v[{b+16+4*j}:{b+19+4*j}], v0, s[32:35], s52 offen offset:{1024*j}")
        else:
            A(f"buffer_load_dwordx4 v[{b+16+4*j}:{b+19+4*j}], v0, s[32:35], s53 offen")
        if j < 4:
            A(f"buffer_load_dwordx4 v[{b+4*j}:{b+3+4*j}], v{2+(j&1)}, s[32:35], s{50+(j>>1)} offen offset:{1024*(i&3)}")
for i in range(NB):
    k2_issue(i)
for i in range(12):
    issued = min(12, i + NB)
    A(f"s_waitcnt vmcnt({9*(issued - i - 1)})")
    if i == 0: stamp(1)
    b = FR + 36 * (i % NB)
    for n in range(5):
        for j in range(4):
            a = 4 * (5*j + n)
            c = "0" if i == 0 else f"a[{a}:{a+3}]"
            A(f"v_mfma_f32_16x16x32_bf16 a[{a}:{a+3}], v[{b+16+4*n}:{b+19+4*n}], v[{b+4*j}:{b+3+4*j}], {c}")
    if i + NB < 12:
        k2_issue(i + NB)
stamp(2)
A("s_nop 7")
for w in range(4):
    A(f"s_cmp_lg_u32 s38, {w}\ns_cbranch_scc1 K2_w{w}_skip")
    for j in range(4):
        if j == w: continue
        k = (w - j - 1) % 4
        for n in range(5):
            a = 4 * (5*j + n)
            A(f"ds_write_b128 v0, a[{a}:{a+3}] offset:{((j*3+k)*5+n)*1024}")
    for n in range(5):
        for r in range(4):
            A(f"v_accvgpr_read_b32 v{100+4*n+r}, a{4*(5*w+n)+r}")
    A(f"K2_w{w}_skip:")
A("s_mul_i32 s42, s38, 15360\nv_add_u32 v2, s42, v0")
A("s_waitcnt lgkmcnt(0)\ns_barrier")
for k in range(3):
    for n in range(5):
        d = 4 + 4*(5*k + n)
        A(f"ds_read_b128 v[{d}:{d+3}], v2 offset:{(k*5+n)*1024}")
A("v_and_b32 v3, 15, v1\ns_lshl_b32 s42, s36, 6\ns_lshl_b32 s43, s38, 4\ns_add_u32 s42, s42, s43\nv_add_u32 v3, s42, v3\nv_mul_u32_u24 v3, 1280, v3")
A("v_lshrrev_b32 v90, 4, v1\nv_lshlrev_b32 v90, 3, v90\nv_add_u32 v3, v3, v90\ns_mul_i32 s42, s37, 160")
for k in range(3):
    A(f"s_waitcnt lgkmcnt({5*(2-k)})")
    for n in range(5):
        for r in range(4):
            A(f"v_add_f32 v{100+4*n+r}, v{100+4*n+r}, v{4+4*(5*k+n)+r}")
for n in range(5):
    A(f"v_cvt_pk_bf16_f32 v{120+2*n}, v{100+4*n}, v{101+4*n}\nv_cvt_pk_bf16_f32 v{121+2*n}, v{102+4*n}, v{103+4*n}")
    A(f"buffer_store_dwordx2 v[{120+2*n}:{121+2*n}], v3, s[16:19], s42 offen offset:{32*n}")
stamp(3)
if STAMPS:
    A("s_waitcnt vmcnt(0)")
stamp(4)
store_stamps(5, STAMP_OFF + 256*64, 38, 0, "K2_st0")
A("K2_end:")
A("s_endpgm")

def kd(name, nv, acc, ns=96):
    out.append(f""".amdhsa_kernel {name}
  .amdhsa_next_free_vgpr {nv}
  .amdhsa_next_free_sgpr {ns}
  .amdhsa_accum_offset {acc}
  .amdhsa_group_segment_fixed_size 0
  .amdhsa_kernarg_size 56
  .amdhsa_user_sgpr_count 2
  .amdhsa_user_sgpr_kernarg_segment_ptr 1
  .amdhsa_system_sgpr_workgroup_id_x 1
.end_amdhsa_kernel""")
out.append('.section .rodata,"a"\n.p2align 6')
kd(K1, 256, 256)
out.append(".p2align 6")
kd(K2, 336, 256)
print("\n".join(out))
```

```python
import sys, argparse
ap = argparse.ArgumentParser()
ap.add_argument("--stamps", action="store_true")
ap.add_argument("--k2map", default="4x2")
ap.add_argument("--nb", type=int, default=3)
ap.add_argument("--clk", action="store_true")
ap.add_argument("--series", action="store_true")
ap.add_argument("--rot", type=int, default=1)
ap.add_argument("--la", default="1,1,1,1,1,1,1,1,1,1")
ap.add_argument("--ldflag", default="", help="extra flags on input loads, e.g. nt")
args = ap.parse_args()
STAMPS = args.stamps
LF = (" " + args.ldflag) if args.ldflag else ""

out = []
def A(s):
    for l in s.split("\n"):
        out.append("    " + l if l and not l.endswith(":") and not l.startswith(".") and not l.startswith(";") else l)

HDR = open("standalone__glu_gated_glu__prompt.s.ref").read().split("\n")
for l in HDR[:8]:
    out.append(l)
K1 = "glu_gemm1_kernel"
K2 = "glu_gemm2_kernel"
out.append(f"; @launch kernel={K1} grid=(256,1,1) block=(512,1,1) lds=163840")
out.append(f"; @launch kernel={K2} grid=(256,1,1) block=(256,1,1) lds=61440")
A('.amdgcn_target "amdgcn-amd-amdhsa--gfx950"')
A(".text")

WDP_OFF = 0x800000
STAMP_OFF = 192 << 20
STG = 40960

def srd(r, lo, hi, size):
    A(f"s_mov_b32 s{r}, s{lo}\ns_mov_b32 s{r+1}, s{hi}\ns_mov_b32 s{r+2}, {size}\ns_mov_b32 s{r+3}, 0x20000")

def stamp(i):
    if STAMPS:
        A(f"s_memrealtime s[{70+2*i}:{71+2*i}]")

def store_stamps(n, base, wave_sreg, wavesel, label, vt=200, srdws=32):
    if not STAMPS:
        return
    A("s_waitcnt lgkmcnt(0)")
    A(f"s_cmp_lg_u32 s{wave_sreg}, {wavesel}\ns_cbranch_scc1 {label}")
    for i in range(n):
        A(f"v_mov_b32 v{vt+2*i}, s{70+2*i}\nv_mov_b32 v{vt+2*i+1}, s{71+2*i}")
    A(f"s_lshl_b32 s68, s2, 6\ns_add_u32 s68, s68, {base}\nv_mov_b32 v{vt+16}, s68")
    A(f"s_mov_b64 exec, 1")
    for i in range(n):
        A(f"buffer_store_dwordx2 v[{vt+2*i}:{vt+2*i+1}], v{vt+16}, s[{srdws}:{srdws+3}], 0 offen offset:{8*i}")
    A(f"{label}:")

A(f".globl {K1}\n.p2align 8\n.type {K1},@function\n{K1}:")
A("s_load_dwordx4 s[4:7], s[0:1], 0")
A("s_load_dwordx4 s[8:11], s[0:1], 16")
A("s_load_dwordx2 s[12:13], s[0:1], 48")
A("s_cmp_ge_u32 s2, 256\ns_cbranch_scc1 K1_end")
stamp(0)
A("v_and_b32 v1, 63, v0\nv_lshrrev_b32 v2, 6, v0")
A("s_and_b32 s40, s2, 7\ns_lshr_b32 s41, s2, 3")
A("v_readfirstlane_b32 s38, v2")
A("s_and_b32 s36, s40, 1\ns_lshl_b32 s36, s36, 3\ns_and_b32 s42, s41, 7\ns_add_u32 s36, s36, s42")
A("s_lshr_b32 s37, s40, 1\ns_lshl_b32 s37, s37, 2\ns_lshr_b32 s42, s41, 3\ns_add_u32 s37, s37, s42")
A("s_cmp_lt_u32 s38, 4\ns_cbranch_scc1 K1_compute")

A("s_sub_u32 s39, s38, 4")
A("v_lshrrev_b32 v10, 3, v1\nv_and_b32 v11, 7, v1\nv_lshrrev_b32 v12, 4, v1\nv_xor_b32 v13, v11, v12\nv_xor_b32 v14, 4, v13")
A("s_lshl_b32 s46, s36, 7\ns_lshl_b32 s47, s39, 5\ns_add_u32 s46, s46, s47\ns_mul_i32 s46, s46, 1280")
A("v_mul_u32_u24 v10, 1280, v10\nv_add_u32 v10, s46, v10\nv_lshlrev_b32 v13, 4, v13\nv_lshlrev_b32 v14, 4, v14")
A("v_add_u32 v2, v10, v13\nv_add_u32 v3, v10, v14")
A(f"v_add_u32 v4, {2*10240 - 2*1024}, v2\nv_add_u32 v5, {3*10240 - 3*1024}, v3\nv_add_u32 v3, {10240 - 1024}, v3")
A("s_mul_i32 s46, s37, 192\ns_mul_i32 s47, s39, 16*3072\ns_add_u32 s46, s46, s47")
for j in range(3):
    A(f"v_add_u32 v10, {64*j}, v1\nv_mul_u32_u24 v11, 171, v10\nv_lshrrev_b32 v11, 11, v11")
    A("v_mul_u32_u24 v12, 12, v11\nv_sub_u32 v12, v10, v12")
    A("v_mul_u32_u24 v13, 3072, v11\nv_add_u32 v13, s46, v13")
    if j: A(f"v_subrev_u32 v13, {1024*j}, v13")
    A(f"v_lshlrev_b32 v12, 4, v12\nv_and_b32 v14, 8, v11\nv_lshlrev_b32 v14, 2, v14\nv_xor_b32 v12, v12, v14\nv_add_u32 v{6+j}, v13, v12")
A("s_lshl_b32 s48, s39, 12")
A("s_mul_i32 s49, s39, 3072\ns_add_u32 s49, s49, 16384")
A("s_add_u32 s50, s49, 12288")
if args.rot == 1: A("s_add_u32 s55, s36, s37\ns_and_b32 s55, s55, 1\ns_mul_i32 s55, s55, 5")
if args.rot == 2: A("s_add_u32 s55, s36, s37\ns_and_b32 s55, s55, 3\ns_mul_i32 s55, s55, 10\ns_lshr_b32 s55, s55, 2")
if args.rot == 3: A("s_lshl_b32 s55, s37, 1\ns_add_u32 s55, s36, s55\ns_and_b32 s55, s55, 7\ns_mul_i32 s55, s55, 10\ns_lshr_b32 s55, s55, 3")
if args.rot == 4: A("s_add_u32 s55, s36, s37\ns_and_b32 s55, s55, 3\ns_mul_i32 s55, s55, 3\ns_min_u32 s55, s55, 6\ns_cmp_eq_u32 s55, 6\ns_cselect_b32 s55, 7, s55")
A("s_waitcnt lgkmcnt(0)")
srd(16, 4, 5, 2621440)
srd(20, 6, 7, 1966080)
srd(24, 8, 9, 1966080)
vm = []
ROT = args.rot
def issue_dma(c):
    st = (c % 4) * STG
    if ROT:
        A(f"s_add_u32 s56, s55, {c}\ns_sub_u32 s57, s56, 10\ns_cmp_ge_u32 s56, 10\ns_cselect_b32 s56, s57, s56\ns_lshl_b32 s51, s56, 7\ns_mul_i32 s52, s56, 64*3072")
    else:
        A(f"s_mov_b32 s51, {c*128}\ns_mov_b32 s52, {c*64*3072}")
    A(f"s_add_u32 m0, s48, {st}\ns_nop 0")
    for j in range(4):
        A(f"buffer_load_dwordx4 v{2+j}, s[16:19], s51 offen offset:{1024*j}{LF} lds"); vm.append(("c", c))
    A(f"s_add_u32 m0, s49, {st}\ns_nop 0")
    for j in range(3):
        A(f"buffer_load_dwordx4 v{6+j}, s[20:23], s52 offen offset:{1024*j}{LF} lds"); vm.append(("c", c))
    A(f"s_add_u32 m0, s50, {st}\ns_nop 0")
    for j in range(3):
        A(f"buffer_load_dwordx4 v{6+j}, s[24:27], s52 offen offset:{1024*j}{LF} lds"); vm.append(("c", c))
def wait_for(tag):
    last = max(i for i, t in enumerate(vm) if t == tag)
    A(f"s_waitcnt vmcnt({len(vm) - 1 - last})")
LA = [int(x) for x in args.la.split(",")]
assert len(LA) == 10
issue_dma(0)
nxt = 1
srd(28, 10, 11, 1966080)
srd(32, 12, 13, 0x10000000)
A(f"v_lshlrev_b32 v13, 4, v1\nv_add_u32 v9, s48, v13\nv_add_u32 v10, s49, v13\nv_add_u32 v11, {2*STG}, v9\nv_add_u32 v12, {2*STG}, v10")
A("s_cmp_ge_u32 s2, 240\ns_cselect_b32 s40, 16, 0\ns_sub_u32 s40, s2, s40")
A("s_mul_i32 s41, s40, 205\ns_lshr_b32 s41, s41, 10")
A("s_mul_i32 s42, s41, 5\ns_sub_u32 s42, s40, s42")
A("s_mul_i32 s43, s41, 32*1280\ns_lshl_b32 s44, s42, 8\ns_add_u32 s43, s43, s44\ns_lshl_b32 s44, s39, 6\ns_add_u32 s43, s43, s44")
A("v_lshrrev_b32 v14, 2, v1\nv_mul_u32_u24 v14, 1280, v14\nv_and_b32 v15, 3, v1\nv_lshlrev_b32 v15, 4, v15\nv_add_u32 v14, v14, v15\nv_add_u32 v216, s43, v14")
A(f"v_add_u32 v217, {16*1280 - 1024}, v216")
A("v_lshrrev_b32 v14, 5, v1\nv_lshlrev_b32 v14, 4, v14")
A("v_bfe_u32 v15, v1, 4, 1\nv_lshlrev_b32 v15, 2, v15\nv_add_u32 v14, v14, v15")
A("v_bfe_u32 v15, v1, 2, 2\nv_add_u32 v14, v14, v15\nv_lshlrev_b32 v14, 6, v14")
WSLOT = 2
A(f"s_lshl_b32 s45, s39, 11\ns_add_u32 s45, s45, {WSLOT*STG}")
A("v_and_b32 v15, 3, v1\nv_lshlrev_b32 v15, 3, v15\nv_add_u32 v14, v14, v15\nv_add_u32 v218, s45, v14")
A("s_lshl_b32 s46, s42, 3\ns_lshl_b32 s47, s39, 1\ns_add_u32 s46, s46, s47")
for c2 in range(2):
    A(f"s_add_u32 s47, s46, {c2}\ns_mul_i32 s53, s47, 205\ns_lshr_b32 s53, s53, 10")
    A("s_mul_i32 s54, s53, 5\ns_sub_u32 s54, s47, s54")
    A("s_mul_i32 s53, s53, 48\ns_add_u32 s53, s53, s41\ns_mul_i32 s53, s53, 5\ns_add_u32 s53, s53, s54")
    A(f"s_lshl_b32 s53, s53, 10\ns_add_u32 s{62+c2}, s53, {WDP_OFF}")
for c in range(10):
    while nxt <= min(9, c + LA[c]):
        assert nxt <= c + 2 or nxt < 4
        issue_dma(nxt); nxt += 1
    wait_for(("c", c))
    A("s_barrier")
    if args.series:
        A(f"s_memrealtime s[64:65]\ns_memtime s[66:67]\ns_waitcnt lgkmcnt(0)\nv_writelane_b32 v219, s64, {4*c}\nv_writelane_b32 v219, s65, {4*c+1}\nv_writelane_b32 v219, s66, {4*c+2}\nv_writelane_b32 v219, s67, {4*c+3}")
    if c == 8:
        A("s_mov_b32 m0, s45\ns_nop 0")
        A("buffer_load_dwordx4 v216, s[28:31], 0 offen lds\nbuffer_load_dwordx4 v217, s[28:31], 0 offen offset:1024 lds")
        vm.append(("w", 0)); vm.append(("w", 0))
assert nxt == 10
A("s_waitcnt vmcnt(0)")
for c2 in range(2):
    for rr in range(2):
        A(f"ds_read_b64_tr_b16 v[{224+4*c2+2*rr}:{225+4*c2+2*rr}], v218 offset:{32*c2 + 512*rr}")
A("s_waitcnt lgkmcnt(0)")
for c2 in range(2):
    A(f"buffer_store_dwordx4 v[{224+4*c2}:{227+4*c2}], v13, s[32:35], s{62+c2} offen")
if args.series:
    A("s_cmp_lg_u32 s39, 0\ns_cbranch_scc1 K1_end")
    A(f"s_lshl_b32 s68, s2, 8\ns_add_u32 s68, s68, {STAMP_OFF + (1<<20)}\nv_lshlrev_b32 v220, 2, v1\nv_add_u32 v220, s68, v220")
    A(f"buffer_store_dword v219, v220, s[32:35], 0 offen")
A("K1_end:")
A("s_endpgm")

A("K1_compute:")
A("s_and_b32 s40, s38, 1\ns_lshr_b32 s41, s38, 1")
VX = 2
VW = 6
FR = 16
ACC = 96
T = 192
A(f"v_and_b32 v{T}, 15, v1")
A(f"s_lshl_b32 s42, s40, 6\nv_add_u32 v{T}, s42, v{T}\nv_lshlrev_b32 v{T}, 7, v{T}")
A(f"v_lshrrev_b32 v{T+1}, 4, v1\nv_bfe_u32 v{T+2}, v1, 1, 3\nv_xor_b32 v{T+1}, v{T+1}, v{T+2}")
for ks in range(2):
    A(f"v_xor_b32 v{T+2}, {4*ks}, v{T+1}\nv_lshlrev_b32 v{T+2}, 4, v{T+2}\nv_add_u32 v{VX+ks}, v{T}, v{T+2}\nv_add_u32 v{VX+2+ks}, {2*STG}, v{VX+ks}")
A(f"v_bfe_u32 v{T}, v1, 4, 1")
A(f"v_lshrrev_b32 v{T+1}, 4, v1")
A(f"v_bfe_u32 v{T+2}, v1, 2, 2")
A(f"v_and_b32 v{T+3}, 3, v1")
A(f"v_lshlrev_b32 v{T+1}, 3, v{T+1}\nv_add_u32 v{T+1}, v{T+1}, v{T+2}\nv_mul_u32_u24 v{T+1}, 192, v{T+1}")
A(f"v_lshlrev_b32 v{T+3}, 3, v{T+3}\nv_add_u32 v{T+1}, v{T+1}, v{T+3}")
A(f"v_add_u32 v{T+1}, 16384, v{T+1}")
A("s_mul_i32 s42, s41, 3")
for t in range(3):
    A(f"s_add_u32 s43, s42, {t}\nv_xor_b32 v{T+2}, s43, v{T}\nv_lshlrev_b32 v{T+2}, 5, v{T+2}\nv_add_u32 v{VW+t}, v{T+1}, v{T+2}\nv_add_u32 v{VW+3+t}, {2*STG}, v{VW+t}")
VH = 250
A(f"v_lshrrev_b32 v{T}, 5, v1\nv_mul_u32_u24 v{T}, 49152, v{T}\nv_and_b32 v{T+1}, 31, v1\nv_lshlrev_b32 v{T+1}, 4, v{T+1}\nv_add_u32 v{VH}, v{T}, v{T+1}")
A("s_lshl_b32 s44, s36, 3\ns_lshl_b32 s45, s40, 2\ns_add_u32 s44, s44, s45\ns_mul_i32 s44, s44, 49152")
A("s_mul_i32 s45, s37, 6\ns_add_u32 s45, s45, s42\ns_lshl_b32 s45, s45, 9\ns_add_u32 s44, s44, s45\ns_add_u32 s45, s44, 98304")
A("s_waitcnt lgkmcnt(0)")
srd(32, 12, 13, 0x10000000)
def xreg(s, mi): return FR + 40*(s & 1) + 4*mi
def wreg(s, t, u): return FR + 40*(s & 1) + 16 + 4*(2*t + u)
def reads(s):
    c, ks = s >> 1, s & 1
    st = c & 3
    hi = 1 if st >= 2 else 0
    so = (st & 1) * STG
    r = []
    def rw(t, u):
        for rr in range(2):
            d = wreg(s, t, u) + 2*rr
            r.append(f"ds_read_b64_tr_b16 v[{d}:{d+1}], v{VW+3*hi+t} offset:{so + 6144*ks + 768*rr + 12288*u}")
    def rx(mi):
        d = xreg(s, mi)
        r.append(f"ds_read_b128 v[{d}:{d+3}], v{VX+2*hi+ks} offset:{so + 2048*mi}")
    rw(0, 0); rx(0); rx(1); rx(2); rx(3); rw(0, 1); rw(1, 0); rw(1, 1); rw(2, 0); rw(2, 1)
    return r
def mfma(s, mi, t, u):
    a = ACC + 4*((mi*3 + t)*2 + u)
    wa, xa = wreg(s, t, u), xreg(s, mi)
    c = "0" if s == 0 else f"v[{a}:{a+3}]"
    return f"v_mfma_f32_16x16x32_bf16 v[{a}:{a+3}], v[{wa}:{wa+3}], v[{xa}:{xa+3}], {c}"
def mfmas(s):
    return [mfma(s, mi, t, u) for t in range(3) for u in range(2) for mi in range(4)]
A("s_barrier")
stamp(1)
if args.clk: A("s_memtime s[80:81]")
if STAMPS: A("s_waitcnt lgkmcnt(0)")
for r in reads(0):
    A(r)
for s in range(18):
    m = mfmas(s)
    nx = reads(s + 1)
    A("s_waitcnt lgkmcnt(0)")
    i0 = 0
    if s & 1:
        for x in m[:4]: A(x)
        A("s_barrier")
        i0 = 4
    k = 0
    for i in range(i0, 24):
        A(m[i])
        if k < 16:
            A(nx[k]); k += 1
for r in reads(19):
    A(r)
stamp(2)
if args.clk: A("s_memtime s[82:83]")
units = [(t, mp) for t in range(3) for mp in range(2)]
def epi(k):
    t, mp = units[k]
    o = 224 + 4*k
    TT = T + 8*(k & 1)
    e = []
    ga = [ACC + 4*(((2*mp + (j >> 2))*3 + t)*2 + 0) + (j & 3) for j in range(8)]
    ua = [ACC + 4*(((2*mp + (j >> 2))*3 + t)*2 + 1) + (j & 3) for j in range(8)]
    for j in range(8): e.append(f"v_mul_f32 v{TT+j}, 0xbfb8aa3b, v{ga[j]}")
    for j in range(8): e.append(f"v_exp_f32 v{TT+j}, v{TT+j}")
    for j in range(8): e.append(f"v_add_f32 v{TT+j}, 1.0, v{TT+j}")
    for j in range(8): e.append(f"v_rcp_f32 v{TT+j}, v{TT+j}")
    for j in range(8): e.append(f"v_mul_f32 v{TT+j}, v{TT+j}, v{ua[j]}")
    for j in range(4): e.append(f"v_cvt_pk_bf16_f32 v{o+j}, v{TT+2*j}, v{TT+2*j+1}")
    e.append("s_nop 1")
    e.append(f"v_permlane32_swap_b32 v{o}, v{o+2}")
    e.append(f"v_permlane32_swap_b32 v{o+1}, v{o+3}")
    e.append(f"buffer_store_dwordx4 v[{o}:{o+3}], v{VH}, s[32:35], s{44+mp} offen offset:{512*t}")
    return e
A("s_waitcnt lgkmcnt(0)")
mstream = [mfma(s, 2*mp + mm, t, u) for (t, mp) in units for s in (18, 19) for u in range(2) for mm in range(2)]
for x in mstream[:16]:
    A(x)
rem = mstream[16:]
for k in range(6):
    e = epi(k)
    ms = rem[8*k:8*k+8]
    pos = [1, 5, 9, 13, 17, 21, 25, 29]
    for i, x in enumerate(e):
        if ms and i in pos:
            A(ms[pos.index(i)])
        A(x)
stamp(3)
if STAMPS:
    A("s_waitcnt vmcnt(0)")
stamp(4)
store_stamps(7 if args.clk else 5, STAMP_OFF, 38, 0, "K1_st0", vt=16)
A("s_endpgm")

A(f".globl {K2}\n.p2align 8\n.type {K2},@function\n{K2}:")
A("s_load_dwordx2 s[12:13], s[0:1], 48")
A("s_load_dwordx2 s[4:5], s[0:1], 32")
A("s_cmp_ge_u32 s2, 256\ns_cbranch_scc1 K2_end")
stamp(0)
A("v_and_b32 v1, 63, v0\nv_lshrrev_b32 v2, 6, v0")
A("s_and_b32 s40, s2, 7\ns_lshr_b32 s41, s2, 3")
A("v_readfirstlane_b32 s38, v2")
if args.k2map == "4x2":
    A("s_and_b32 s36, s40, 3\ns_lshl_b32 s36, s36, 3\ns_and_b32 s42, s41, 7\ns_add_u32 s36, s36, s42")
    A("s_lshr_b32 s37, s40, 2\ns_lshl_b32 s37, s37, 2\ns_lshr_b32 s42, s41, 3\ns_add_u32 s37, s37, s42")
else:
    A("s_lshl_b32 s36, s40, 2\ns_and_b32 s42, s41, 3\ns_add_u32 s36, s36, s42")
    A("s_lshr_b32 s37, s41, 2")
A("v_lshlrev_b32 v0, 4, v1")
A("s_lshl_b32 s42, s36, 2\ns_mul_i32 s42, s42, 48\ns_mul_i32 s43, s38, 12\ns_add_u32 s42, s42, s43\ns_lshl_b32 s42, s42, 10")
A("v_add_u32 v2, s42, v0\nv_add_u32 v3, 49152, v2")
A("s_mul_i32 s48, s37, 48\ns_add_u32 s48, s48, s43\ns_mul_i32 s48, s48, 5120")
A(f"s_add_u32 s48, s48, {WDP_OFF}")
A("s_waitcnt lgkmcnt(0)")
srd(32, 12, 13, 0x10000000)
NB = args.nb
FR2 = 4
def k2_issue(i):
    b = FR2 + 36 * (i % NB)
    A(f"s_mov_b32 s50, {1024*(i & ~3)}\ns_add_u32 s51, s50, 98304\ns_add_u32 s52, s48, {5120*i}\ns_add_u32 s53, s52, 4096")
    for j in range(5):
        if j < 4:
            A(f"buffer_load_dwordx4 v[{b+16+4*j}:{b+19+4*j}], v0, s[32:35], s52 offen offset:{1024*j}")
        else:
            A(f"buffer_load_dwordx4 v[{b+16+4*j}:{b+19+4*j}], v0, s[32:35], s53 offen")
        if j < 4:
            A(f"buffer_load_dwordx4 v[{b+4*j}:{b+3+4*j}], v{2+(j&1)}, s[32:35], s{50+(j>>1)} offen offset:{1024*(i&3)}")
for i in range(NB):
    k2_issue(i)
srd(16, 4, 5, 2621440)
for i in range(12):
    issued = min(12, i + NB)
    A(f"s_waitcnt vmcnt({9*(issued - i - 1)})")
    if i == 0: stamp(1)
    b = FR2 + 36 * (i % NB)
    for n in range(5):
        for j in range(4):
            a = 4 * (5*j + n)
            c = "0" if i == 0 else f"a[{a}:{a+3}]"
            A(f"v_mfma_f32_16x16x32_bf16 a[{a}:{a+3}], v[{b+16+4*n}:{b+19+4*n}], v[{b+4*j}:{b+3+4*j}], {c}")
    if i + NB < 12:
        k2_issue(i + NB)
stamp(2)
A("s_nop 7")
for w in range(4):
    A(f"s_cmp_lg_u32 s38, {w}\ns_cbranch_scc1 K2_w{w}_skip")
    for j in range(4):
        if j == w: continue
        k = (w - j - 1) % 4
        for n in range(5):
            a = 4 * (5*j + n)
            A(f"ds_write_b128 v0, a[{a}:{a+3}] offset:{((j*3+k)*5+n)*1024}")
    for n in range(5):
        for r in range(4):
            A(f"v_accvgpr_read_b32 v{100+4*n+r}, a{4*(5*w+n)+r}")
    A(f"K2_w{w}_skip:")
A("s_mul_i32 s42, s38, 15360\nv_add_u32 v2, s42, v0")
A("s_waitcnt lgkmcnt(0)\ns_barrier")
for k in range(3):
    for n in range(5):
        d = 4 + 4*(5*k + n)
        A(f"ds_read_b128 v[{d}:{d+3}], v2 offset:{(k*5+n)*1024}")
A("v_and_b32 v3, 15, v1\ns_lshl_b32 s42, s36, 6\ns_lshl_b32 s43, s38, 4\ns_add_u32 s42, s42, s43\nv_add_u32 v3, s42, v3\nv_mul_u32_u24 v3, 1280, v3")
A("v_lshrrev_b32 v90, 4, v1\nv_lshlrev_b32 v90, 3, v90\nv_add_u32 v3, v3, v90\ns_mul_i32 s42, s37, 160")
for k in range(3):
    A(f"s_waitcnt lgkmcnt({5*(2-k)})")
    for n in range(5):
        for r in range(4):
            A(f"v_add_f32 v{100+4*n+r}, v{100+4*n+r}, v{4+4*(5*k+n)+r}")
for n in range(5):
    A(f"v_cvt_pk_bf16_f32 v{120+2*n}, v{100+4*n}, v{101+4*n}\nv_cvt_pk_bf16_f32 v{121+2*n}, v{102+4*n}, v{103+4*n}")
    A(f"buffer_store_dwordx2 v[{120+2*n}:{121+2*n}], v3, s[16:19], s42 offen offset:{32*n}")
stamp(3)
if STAMPS:
    A("s_waitcnt vmcnt(0)")
stamp(4)
store_stamps(5, STAMP_OFF + 256*64, 38, 0, "K2_st0")
A("K2_end:")
A("s_endpgm")

def kd(name, nv, acc, ns=96):
    out.append(f""".amdhsa_kernel {name}
  .amdhsa_next_free_vgpr {nv}
  .amdhsa_next_free_sgpr {ns}
  .amdhsa_accum_offset {acc}
  .amdhsa_group_segment_fixed_size 0
  .amdhsa_kernarg_size 56
  .amdhsa_user_sgpr_count 2
  .amdhsa_user_sgpr_kernarg_segment_ptr 1
  .amdhsa_system_sgpr_workgroup_id_x 1
.end_amdhsa_kernel""")
out.append('.section .rodata,"a"\n.p2align 6')
kd(K1, 256, 256)
out.append(".p2align 6")
kd(K2, 336, 256)
print("\n".join(out))
```

```python
import sys, argparse
ap = argparse.ArgumentParser()
ap.add_argument("--stamps", action="store_true")
ap.add_argument("--p2map", default="4x2")
ap.add_argument("--rot", type=int, default=3)
ap.add_argument("--rot2", type=int, default=0)
ap.add_argument("--early", type=int, default=0, help="Wd0 instrs (per L wave) issued before B9")
ap.add_argument("--hring", type=int, default=5)
ap.add_argument("--thr", type=int, default=6, help="max outstanding DMA per L wave, phase 1")
ap.add_argument("--thr2", type=int, default=4, help="max outstanding Wd DMA per L wave")
ap.add_argument("--pfat", default="3,4,5,6", help="barriers before which a Wd prefetch piece is issued")
ap.add_argument("--wdat", default="9:6,10:4", help="barrier:count of Wd ops issued before that barrier")
ap.add_argument("--late", type=int, default=1, help="1: flag before B11 (old order)")
ap.add_argument("--sleep", type=int, default=4)
ap.add_argument("--n11", type=int, default=40)
ap.add_argument("--bal", type=int, default=0)
ap.add_argument("--pk", type=int, default=1)
args = ap.parse_args()
STAMPS = args.stamps

out = []
def A(s):
    for l in s.split("\n"):
        out.append("    " + l if l and not l.endswith(":") and not l.startswith(".") and not l.startswith(";") else l)

HDR = open("standalone__glu_gated_glu__prompt.s.ref").read().split("\n")
for l in HDR[:8]:
    out.append(l)
KN = "standalone__glu_gated_glu__prompt_kernel"
out.append(f"; @launch grid=(256,1,1) block=(512,1,1) lds=163840")
A('.amdgcn_target "amdgcn-amd-amdhsa--gfx950"')
A(".text")

FLAG_OFF = 0x700000
STAMP_OFF = 192 << 20
STG = 40960

def srd(r, lo, hi, size):
    A(f"s_mov_b32 s{r}, s{lo}\ns_mov_b32 s{r+1}, s{hi}\ns_mov_b32 s{r+2}, {size}\ns_mov_b32 s{r+3}, 0x20000")

NST = [0]
def stamp(i, vreg):
    if STAMPS:
        A(f"s_memrealtime s[90:91]\ns_waitcnt lgkmcnt(0)\nv_writelane_b32 v{vreg}, s90, {2*i}\nv_writelane_b32 v{vreg}, s91, {2*i+1}")

def store_stamps(vreg, vtmp, rec, label, wave_sreg, wavesel):
    if not STAMPS:
        return
    A(f"s_cmp_lg_u32 s{wave_sreg}, {wavesel}\ns_cbranch_scc1 {label}")
    A(f"s_lshl_b32 s90, s2, 7\ns_add_u32 s90, s90, {STAMP_OFF + rec*256*128}\nv_lshlrev_b32 v{vtmp}, 2, v1\nv_add_u32 v{vtmp}, s90, v{vtmp}")
    A(f"s_mov_b64 exec, 0xffffffff\nbuffer_store_dword v{vreg}, v{vtmp}, s[32:35], 0 offen")
    A(f"{label}:")

A(f".globl {KN}\n.p2align 8\n.type {KN},@function\n{KN}:")
A("s_load_dwordx8 s[4:11], s[0:1], 0")
A("s_load_dwordx4 s[12:15], s[0:1], 32")
A("s_load_dwordx2 s[36:37], s[0:1], 48")
A("s_cmp_ge_u32 s2, 256\ns_cbranch_scc1 L_end")
A("v_and_b32 v1, 63, v0\nv_lshrrev_b32 v2, 6, v0")
A("s_and_b32 s40, s2, 7\ns_lshr_b32 s41, s2, 3")
A("v_readfirstlane_b32 s38, v2")
A("s_and_b32 s60, s40, 1\ns_lshl_b32 s60, s60, 3\ns_and_b32 s42, s41, 7\ns_add_u32 s60, s60, s42")
A("s_lshr_b32 s61, s40, 1\ns_lshl_b32 s61, s61, 2\ns_lshr_b32 s42, s41, 3\ns_add_u32 s61, s61, s42")
if args.p2map == "8x1":
    A("s_and_b32 s42, s41, 3\ns_lshl_b32 s62, s40, 2\ns_add_u32 s62, s62, s42\ns_lshr_b32 s63, s41, 2")
    A("s_lshr_b32 s43, s42, 1\ns_add_u32 s64, s63, s42\ns_add_u32 s64, s64, s43")
else:
    A("s_and_b32 s42, s41, 7\ns_and_b32 s62, s40, 3\ns_lshl_b32 s62, s62, 3\ns_add_u32 s62, s62, s42")
    A("s_lshr_b32 s43, s41, 3\ns_lshr_b32 s63, s40, 2\ns_lshl_b32 s63, s63, 2\ns_add_u32 s63, s63, s43")
    A("s_lshr_b32 s44, s43, 1\ns_add_u32 s64, s42, s43\ns_add_u32 s64, s64, s44")
A("s_sub_u32 s43, s64, 6\ns_cmp_ge_u32 s64, 6\ns_cselect_b32 s64, s43, s64")
if not args.rot2:
    A("s_mov_b32 s64, 0")
A("s_cmp_lt_u32 s38, 4\ns_cbranch_scc1 L_compute")

A("s_sub_u32 s39, s38, 4")
A("v_lshrrev_b32 v10, 3, v1\nv_and_b32 v11, 7, v1\nv_lshrrev_b32 v12, 4, v1\nv_xor_b32 v13, v11, v12\nv_xor_b32 v14, 4, v13")
A("s_lshl_b32 s46, s60, 7\ns_lshl_b32 s47, s39, 5\ns_add_u32 s46, s46, s47\ns_mul_i32 s46, s46, 1280")
A("v_mul_u32_u24 v10, 1280, v10\nv_add_u32 v10, s46, v10\nv_lshlrev_b32 v13, 4, v13\nv_lshlrev_b32 v14, 4, v14")
A("v_add_u32 v2, v10, v13\nv_add_u32 v3, v10, v14")
A(f"v_add_u32 v4, {2*10240 - 2*1024}, v2\nv_add_u32 v5, {3*10240 - 3*1024}, v3\nv_add_u32 v3, {10240 - 1024}, v3")
A("s_mul_i32 s46, s61, 192\ns_mul_i32 s47, s39, 16*3072\ns_add_u32 s46, s46, s47")
for j in range(3):
    A(f"v_add_u32 v10, {64*j}, v1\nv_mul_u32_u24 v11, 171, v10\nv_lshrrev_b32 v11, 11, v11")
    A("v_mul_u32_u24 v12, 12, v11\nv_sub_u32 v12, v10, v12")
    A("v_mul_u32_u24 v13, 3072, v11\nv_add_u32 v13, s46, v13")
    if j: A(f"v_subrev_u32 v13, {1024*j}, v13")
    A(f"v_lshlrev_b32 v12, 4, v12\nv_and_b32 v14, 8, v11\nv_lshlrev_b32 v14, 2, v14\nv_xor_b32 v12, v12, v14\nv_add_u32 v{6+j}, v13, v12")
A("s_lshl_b32 s48, s39, 12")
A("s_mul_i32 s49, s39, 3072\ns_add_u32 s49, s49, 16384")
A("s_add_u32 s50, s49, 12288")
if args.rot == 0: A("s_mov_b32 s55, 0")
if args.rot == 1: A("s_add_u32 s55, s60, s61\ns_and_b32 s55, s55, 1\ns_mul_i32 s55, s55, 5")
if args.rot == 2: A("s_add_u32 s55, s60, s61\ns_and_b32 s55, s55, 3\ns_mul_i32 s55, s55, 10\ns_lshr_b32 s55, s55, 2")
if args.rot == 3: A("s_lshl_b32 s55, s61, 1\ns_add_u32 s55, s60, s55\ns_and_b32 s55, s55, 7\ns_mul_i32 s55, s55, 10\ns_lshr_b32 s55, s55, 3")
A("s_waitcnt lgkmcnt(0)")
srd(16, 4, 5, 2621440)
srd(20, 6, 7, 1966080)
srd(24, 8, 9, 1966080)
ops = []
for c in range(10):
    st = (c % 3) * STG
    pre = f"s_add_u32 s56, s55, {c}\ns_sub_u32 s57, s56, 10\ns_cmp_ge_u32 s56, 10\ns_cselect_b32 s56, s57, s56\ns_lshl_b32 s51, s56, 7\ns_mul_i32 s52, s56, 64*3072\n"
    for j in range(4):
        p = (pre + f"s_add_u32 m0, s48, {st}") if j == 0 else ""
        ops.append((c, p, f"buffer_load_dwordx4 v{2+j}, s[16:19], s51 offen offset:{1024*j} lds"))
    for j in range(3):
        p = f"s_add_u32 m0, s49, {st}" if j == 0 else ""
        ops.append((c, p, f"buffer_load_dwordx4 v{6+j}, s[20:23], s52 offen offset:{1024*j} lds"))
    for j in range(3):
        p = f"s_add_u32 m0, s50, {st}" if j == 0 else ""
        ops.append((c, p, f"buffer_load_dwordx4 v{6+j}, s[24:27], s52 offen offset:{1024*j} lds"))
vm = []
def emit_op(op, thr):
    c, p, ins = op
    if p: A(p)
    if thr and len(vm) >= thr:
        A(f"s_waitcnt vmcnt({thr-1})")
    elif p:
        A("s_nop 0")
    A(ins); vm.append(("c", c))
def wait_for(tag):
    last = max(i for i, t in enumerate(vm) if t == tag)
    A(f"s_waitcnt vmcnt({len(vm) - 1 - last})")
for op in ops[:args.thr]:
    emit_op(op, args.thr)
srd(28, 10, 11, 1966080)
srd(32, 36, 37, 0x10000000)
if STAMPS: A("v_mov_b32 v40, 0")
stamp(0, 40)
A("s_lshr_b32 s46, s39, 1\ns_mul_i32 s46, s46, 24\ns_and_b32 s47, s39, 1\ns_lshl_b32 s47, s47, 1\ns_add_u32 s46, s46, s47\ns_mul_i32 s46, s46, 32*1280")
A("s_mul_i32 s47, s63, 160\ns_add_u32 s46, s46, s47")
for j in range(5):
    A(f"v_add_u32 v10, {64*j}, v1\nv_mul_u32_u24 v11, 205, v10\nv_lshrrev_b32 v11, 11, v11")
    A("v_mul_u32_u24 v12, 10, v11\nv_sub_u32 v12, v10, v12\nv_lshlrev_b32 v12, 4, v12")
    A("v_mul_u32_u24 v13, 1280, v11\nv_add_u32 v13, s46, v13")
    if 0 < j < 4: A(f"v_subrev_u32 v13, {1024*j}, v13")
    A(f"v_add_u32 v{16+j}, v13, v12")
A("s_mul_i32 s53, s39, 10240")
WSLOT = [3, 1, 2, 0, 3, 1]
WFREE = [-1, 8, 9, 10, 12, 12]
wdn = [0]
lastbar = [-1]
def issue_wd_ops(cnt):
    first = True
    for _ in range(cnt):
        g = wdn[0]; wdn[0] += 1
        jj, n = g // 10, g % 10
        assert lastbar[0] >= WFREE[jj], (jj, lastbar[0])
        st = WSLOT[jj] * STG
        s, j = n // 5, n % 5
        if n == 0:
            A(f"s_add_u32 s56, s64, {jj}\ns_sub_u32 s57, s56, 6\ns_cmp_ge_u32 s56, 6\ns_cselect_b32 s56, s57, s56\ns_mul_i32 s58, s56, 128*1280\ns_add_u32 s59, s58, 32*1280")
        if j == 0 or j == 4 or first:
            A(f"s_add_u32 m0, s53, {st + 5120*s + (4096 if j == 4 else 0)}")
        first = False
        A(f"s_waitcnt vmcnt({args.thr2 - 1})")
        A(f"buffer_load_dwordx4 v{16+j}, s[28:31], s{58+s} offen offset:{1024*j if j < 4 else 0} lds"); vm.append(("w", jj))
LPR = 10 if args.p2map == "8x1" else 5
A("s_lshr_b32 s46, s2, 3\ns_lshl_b32 s46, s46, 2\ns_add_u32 s46, s46, s39\ns_mul_i32 s46, s46, 12*1280")
if LPR == 5:
    A("s_bfe_u32 s47, s2, 0x10002\ns_mul_i32 s47, s47, 640\ns_add_u32 s46, s46, s47")
A(f"v_mul_u32_u24 v11, {205 if LPR == 10 else 410}, v1\nv_lshrrev_b32 v11, 11, v11\nv_mul_u32_u24 v12, {LPR}, v11\nv_sub_u32 v12, v1, v12\nv_lshlrev_b32 v12, 7, v12")
A(f"v_mul_u32_u24 v11, 1280, v11\nv_add_u32 v11, v11, v12\nv_add_u32 v11, s46, v11\nv_cmp_gt_u32 vcc, {3*LPR}, v1\ns_nop 1\nv_cndmask_b32 v21, -1, v11, vcc")
PFAT = [int(x) for x in args.pfat.split(",") if x]
if args.bal:
    assert args.rot == 3
    A("s_and_b32 s46, s61, 3\ns_lshl_b32 s46, s46, 2\ns_add_u32 s46, s46, s39")
    A("s_lshr_b32 s47, s46, 3\ns_mul_i32 s47, s47, 5\ns_and_b32 s56, s60, 1\ns_add_u32 s47, s47, s56\ns_add_u32 s47, s47, 4\ns_cmp_eq_u32 s47, 10\ns_cselect_b32 s47, 0, s47\ns_lshl_b32 s47, s47, 7")
    A("s_and_b32 s46, s46, 7\ns_lshl_b32 s46, s46, 4\ns_lshl_b32 s56, s60, 7\ns_add_u32 s46, s46, s56\ns_mul_i32 s46, s46, 1280\ns_add_u32 s46, s46, s47")
    A("v_mul_u32_u24 v11, 1280, v1\nv_add_u32 v11, s46, v11\nv_cmp_gt_u32 vcc, 16, v1\ns_nop 1\nv_cndmask_b32 v23, -1, v11, vcc")
    A("s_lshr_b32 s46, s39, 1\ns_mul_i32 s46, s46, 320\ns_add_u32 s46, s46, 256\ns_and_b32 s47, s60, 7\ns_lshl_b32 s47, s47, 3\ns_add_u32 s46, s46, s47\ns_mul_i32 s46, s46, 3072\ns_mul_i32 s47, s61, 192\ns_add_u32 s46, s46, s47")
    A("v_lshrrev_b32 v11, 1, v1\nv_mul_u32_u24 v11, 3072, v11\nv_and_b32 v12, 1, v1\nv_lshlrev_b32 v12, 7, v12\nv_add_u32 v11, v11, v12\nv_add_u32 v11, s46, v11\nv_cndmask_b32 v24, -1, v11, vcc")
    A("s_bitcmp1_b32 s39, 0\ns_cselect_b32 s84, s8, s6\ns_cselect_b32 s85, s9, s7\ns_mov_b32 s86, 1966080\ns_mov_b32 s87, 0x20000")
WDAT = dict((int(x.split(":")[0]), int(x.split(":")[1])) for x in args.wdat.split(",") if x)
oi = args.thr
npf = 0
def m0_restore():
    if oi < 100 and not ops[oi][1]:
        k = oi
        while not ops[k][1]: k -= 1
        A(ops[k][1].split("\n")[-1])
for c in range(10):
    tgt = min(100, 10*(c + 1) + args.thr)
    while oi < tgt:
        emit_op(ops[oi], args.thr); oi += 1
        if oi == 10 and args.bal:
            A("buffer_load_dword v22, v24, s[84:87], 0 offen\nbuffer_load_dword v22, v23, s[16:19], 0 offen"); vm.append(("p", 9)); vm.append(("p", 9))
    if c in WDAT and c == 9:
        issue_wd_ops(WDAT[c])
    wait_for(("c", c))
    for _ in range(PFAT.count(c)):
        A(f"s_mov_b32 s54, {npf*3*1280}\nbuffer_load_dword v22, v21, s[28:31], s54 offen"); vm.append(("p", npf)); npf += 1
    if c in WDAT and c != 9:
        issue_wd_ops(WDAT[c]); m0_restore()
    A("s_barrier"); lastbar[0] = c
    if c in (0, 4, 9): stamp({0: 1, 4: 2, 9: 3}[c], 40)
if 10 in WDAT: issue_wd_ops(WDAT[10])
A("s_barrier"); lastbar[0] = 10
stamp(7, 40)
issue_wd_ops(args.n11 - wdn[0])
wait_for(("w", 1))
stamp(4, 40)
A("s_barrier")
NCERT = args.n11 // 10
wait_for(("w", NCERT - 1))
A("s_barrier"); lastbar[0] = 12
stamp(5, 40)
issue_wd_ops(60 - wdn[0])
A("s_waitcnt vmcnt(0)")
stamp(6, 40)
A("s_barrier")
store_stamps(40, 41, 1, "L_st1", 39, 0)
A("L_end:")
A("s_endpgm")

A("L_compute:")
A("s_and_b32 s40, s38, 1\ns_lshr_b32 s41, s38, 1")
VX = 2
VW = 6
FR = 16
ACC = 96
T = 192
VST = 15
A(f"v_and_b32 v{T}, 15, v1")
A(f"s_lshl_b32 s42, s40, 6\nv_add_u32 v{T}, s42, v{T}\nv_lshlrev_b32 v{T}, 7, v{T}")
A(f"v_lshrrev_b32 v{T+1}, 4, v1\nv_bfe_u32 v{T+2}, v1, 1, 3\nv_xor_b32 v{T+1}, v{T+1}, v{T+2}")
for ks in range(2):
    A(f"v_xor_b32 v{T+2}, {4*ks}, v{T+1}\nv_lshlrev_b32 v{T+2}, 4, v{T+2}\nv_add_u32 v{VX+ks}, v{T}, v{T+2}\nv_add_u32 v{VX+2+ks}, {2*STG}, v{VX+ks}")
A(f"v_bfe_u32 v{T}, v1, 4, 1")
A(f"v_lshrrev_b32 v{T+1}, 4, v1")
A(f"v_bfe_u32 v{T+2}, v1, 2, 2")
A(f"v_and_b32 v{T+3}, 3, v1")
A(f"v_lshlrev_b32 v{T+1}, 3, v{T+1}\nv_add_u32 v{T+1}, v{T+1}, v{T+2}\nv_mul_u32_u24 v{T+1}, 192, v{T+1}")
A(f"v_lshlrev_b32 v{T+3}, 3, v{T+3}\nv_add_u32 v{T+1}, v{T+1}, v{T+3}")
A(f"v_add_u32 v{T+1}, 16384, v{T+1}")
A("s_mul_i32 s42, s41, 3")
for t in range(3):
    A(f"s_add_u32 s43, s42, {t}\nv_xor_b32 v{T+2}, s43, v{T}\nv_lshlrev_b32 v{T+2}, 5, v{T+2}\nv_add_u32 v{VW+t}, v{T+1}, v{T+2}\nv_add_u32 v{VW+3+t}, {2*STG}, v{VW+t}")
VH = 12
A(f"v_lshrrev_b32 v{T}, 5, v1\nv_mul_u32_u24 v{T}, 49152, v{T}\nv_and_b32 v{T+1}, 31, v1\nv_lshlrev_b32 v{T+1}, 4, v{T+1}\nv_add_u32 v{VH}, v{T}, v{T+1}")
A("s_lshl_b32 s44, s60, 3\ns_lshl_b32 s45, s40, 2\ns_add_u32 s44, s44, s45\ns_mul_i32 s44, s44, 49152")
A("s_mul_i32 s45, s61, 6\ns_add_u32 s45, s45, s42\ns_lshl_b32 s45, s45, 9\ns_add_u32 s44, s44, s45\ns_add_u32 s45, s44, 98304")
A("v_mov_b32 v13, 0")
A("s_mov_b32 s82, 0xbfb8aa3b\ns_mov_b32 s83, 0xbfb8aa3b\ns_mov_b32 s84, 1.0\ns_mov_b32 s85, 1.0")
A("s_waitcnt lgkmcnt(0)")
srd(32, 36, 37, 0x10000000)
srd(72, 14, 15, 256)
srd(68, 12, 13, 2621440)
if STAMPS: A(f"v_mov_b32 v{VST}, 0")
stamp(0, VST)
A("s_or_b32 s46, s2, s38\ns_cmp_lg_u32 s46, 0\ns_cbranch_scc1 L_nononce")
A("s_memrealtime s[46:47]\ns_waitcnt lgkmcnt(0)\ns_or_b32 s46, s46, 1\nv_mov_b32 v14, s46")
A("buffer_store_dword v14, v13, s[72:75], 0 offen sc1")
A("L_nononce:")
def xreg(s, mi): return FR + 40*(s & 1) + 4*mi
def wreg(s, t, u): return FR + 40*(s & 1) + 16 + 4*(2*t + u)
def reads(s):
    c, ks = s >> 1, s & 1
    st = c % 3
    hi = 1 if st >= 2 else 0
    so = (st & 1) * STG
    r = []
    def rw(t, u):
        for rr in range(2):
            d = wreg(s, t, u) + 2*rr
            r.append(f"ds_read_b64_tr_b16 v[{d}:{d+1}], v{VW+3*hi+t} offset:{so + 6144*ks + 768*rr + 12288*u}")
    def rx(mi):
        d = xreg(s, mi)
        r.append(f"ds_read_b128 v[{d}:{d+3}], v{VX+2*hi+ks} offset:{so + 2048*mi}")
    rw(0, 0); rx(0); rx(1); rx(2); rx(3); rw(0, 1); rw(1, 0); rw(1, 1); rw(2, 0); rw(2, 1)
    return r
def mfma(s, mi, t, u):
    a = ACC + 4*((mi*3 + t)*2 + u)
    wa, xa = wreg(s, t, u), xreg(s, mi)
    c = "0" if s == 0 else f"v[{a}:{a+3}]"
    return f"v_mfma_f32_16x16x32_bf16 v[{a}:{a+3}], v[{wa}:{wa+3}], v[{xa}:{xa+3}], {c}"
def mfmas(s):
    return [mfma(s, mi, t, u) for t in range(3) for u in range(2) for mi in range(4)]
A("s_barrier")
stamp(1, VST)
for r in reads(0):
    A(r)
for s in range(18):
    m = mfmas(s)
    nx = reads(s + 1)
    A("s_waitcnt lgkmcnt(0)")
    i0 = 0
    if s & 1:
        for x in m[:4]: A(x)
        A("s_barrier")
        if s == 3:
            A("buffer_load_dword v14, v13, s[72:75], 0 offen sc1")
        i0 = 4
    k = 0
    for i in range(i0, 24):
        A(m[i])
        if k < 16:
            A(nx[k]); k += 1
for r in reads(19):
    A(r)
units = [(t, mp) for t in range(3) for mp in range(2)]
def epi(k):
    t, mp = units[k]
    o = 224 + 4*k
    TT = T + 8*(k & 1)
    e = []
    ga = [ACC + 4*(((2*mp + (j >> 2))*3 + t)*2 + 0) + (j & 3) for j in range(8)]
    ua = [ACC + 4*(((2*mp + (j >> 2))*3 + t)*2 + 1) + (j & 3) for j in range(8)]
    if args.pk:
        for j in range(0, 8, 2): e.append(f"v_pk_mul_f32 v[{TT+j}:{TT+j+1}], v[{ga[j]}:{ga[j]+1}], s[82:83]")
        for j in range(8): e.append(f"v_exp_f32 v{TT+j}, v{TT+j}")
        for j in range(0, 8, 2): e.append(f"v_pk_add_f32 v[{TT+j}:{TT+j+1}], v[{TT+j}:{TT+j+1}], s[84:85]")
        for j in range(8): e.append(f"v_rcp_f32 v{TT+j}, v{TT+j}")
        for j in range(0, 8, 2): e.append(f"v_pk_mul_f32 v[{TT+j}:{TT+j+1}], v[{TT+j}:{TT+j+1}], v[{ua[j]}:{ua[j]+1}]")
    else:
        for j in range(8): e.append(f"v_mul_f32 v{TT+j}, 0xbfb8aa3b, v{ga[j]}")
        for j in range(8): e.append(f"v_exp_f32 v{TT+j}, v{TT+j}")
        for j in range(8): e.append(f"v_add_f32 v{TT+j}, 1.0, v{TT+j}")
        for j in range(8): e.append(f"v_rcp_f32 v{TT+j}, v{TT+j}")
        for j in range(8): e.append(f"v_mul_f32 v{TT+j}, v{TT+j}, v{ua[j]}")
    for j in range(4): e.append(f"v_cvt_pk_bf16_f32 v{o+j}, v{TT+2*j}, v{TT+2*j+1}")
    e.append("s_nop 1")
    e.append(f"v_permlane32_swap_b32 v{o}, v{o+2}")
    e.append(f"v_permlane32_swap_b32 v{o+1}, v{o+3}")
    e.append(f"buffer_store_dwordx4 v[{o}:{o+3}], v{VH}, s[32:35], s{44+mp} offen offset:{512*t} sc1")
    return e
A("s_waitcnt lgkmcnt(0)")
A("s_barrier")
stamp(2, VST)
mstream = [mfma(s, 2*mp + mm, t, u) for (t, mp) in units for s in (18, 19) for u in range(2) for mm in range(2)]
for x in mstream[:16]:
    A(x)
rem = mstream[16:]
for k in range(6):
    e = epi(k)
    ms = rem[8*k:8*k+8]
    pos = [1, 4, 7, 10, 13, 16, 19, 22] if args.pk else [1, 5, 9, 13, 17, 21, 25, 29]
    for i, x in enumerate(e):
        if ms and i in pos:
            A(ms[pos.index(i)])
        A(x)
stamp(3, VST)
A("s_lshl_b32 s46, s60, 1\ns_add_u32 s46, s46, s40\ns_lshl_b32 s46, s46, 5\ns_lshl_b32 s47, s61, 1\ns_add_u32 s46, s46, s47\ns_add_u32 s46, s46, s41")
A(f"s_lshl_b32 s46, s46, 2\ns_add_u32 s46, s46, {FLAG_OFF}\nv_mov_b32 v2, s46")
A(f"s_lshl_b32 s46, s62, 7\ns_lshl_b32 s47, s41, 6\ns_add_u32 s46, s46, s47\ns_add_u32 s46, s46, {FLAG_OFF}")
A("v_and_b32 v3, 15, v1\nv_lshlrev_b32 v3, 2, v3\nv_add_u32 v3, s46, v3")
A("v_lshlrev_b32 v8, 4, v1")
A("s_lshl_b32 s46, s62, 2\ns_lshl_b32 s47, s40, 1\ns_add_u32 s46, s46, s47\ns_mul_i32 s46, s46, 48\ns_mul_i32 s47, s41, 24\ns_add_u32 s46, s46, s47\ns_lshl_b32 s46, s46, 10")
A("v_add_u32 v4, s46, v8\nv_add_u32 v5, 49152, v4")
A(f"v_lshrrev_b32 v{T}, 5, v1\nv_lshlrev_b32 v{T}, 4, v{T}\nv_bfe_u32 v{T+1}, v1, 4, 1\nv_lshlrev_b32 v{T+1}, 2, v{T+1}\nv_add_u32 v{T}, v{T}, v{T+1}")
A(f"v_bfe_u32 v{T+1}, v1, 2, 2\nv_add_u32 v{T}, v{T}, v{T+1}\nv_mul_u32_u24 v{T}, 160, v{T}\nv_and_b32 v{T+1}, 3, v1\nv_lshlrev_b32 v{T+1}, 3, v{T+1}\nv_add_u32 v{T}, v{T}, v{T+1}")
A(f"s_mul_i32 s46, s41, 20480\nv_add_u32 v6, s46, v{T}\nv_add_u32 v7, {2*STG}, v6")
A("v_and_b32 v9, 15, v1\ns_lshl_b32 s46, s62, 6\ns_lshl_b32 s47, s40, 5\ns_add_u32 s46, s46, s47\ns_lshl_b32 s47, s41, 4\ns_add_u32 s46, s46, s47\nv_add_u32 v9, s46, v9\nv_mul_u32_u24 v9, 1280, v9")
A(f"v_lshrrev_b32 v{T}, 4, v1\nv_lshlrev_b32 v{T}, 3, v{T}\nv_add_u32 v9, v9, v{T}\ns_mul_i32 s46, s63, 160\nv_add_u32 v9, s46, v9")
for jj in range(6):
    A(f"s_add_u32 s56, s64, {jj}\ns_sub_u32 s57, s56, 6\ns_cmp_ge_u32 s56, 6\ns_cselect_b32 s56, s57, s56\ns_lshl_b32 s{76+jj}, s56, 12")
def flag_code():
    A("s_waitcnt vmcnt(0)")
    stamp(4, VST)
    A("v_readfirstlane_b32 s65, v14")
    A("s_mov_b32 s66, 0")
    A("s_cmp_lg_u32 s65, 0\ns_cbranch_scc1 L_havenonce")
    A("L_nloop:")
    A("buffer_load_dword v14, v13, s[72:75], 0 offen sc1\ns_waitcnt vmcnt(0)\nv_readfirstlane_b32 s65, v14\ns_add_u32 s66, s66, 1")
    A("s_cmp_gt_u32 s66, 0x100000\ns_cbranch_scc1 L_havenonce\ns_cmp_eq_u32 s65, 0\ns_cbranch_scc1 L_nloop")
    A("L_havenonce:")
    A("s_mov_b64 exec, 1\nbuffer_store_dword v14, v2, s[32:35], 0 offen sc1\ns_mov_b64 exec, -1")

if args.late: flag_code()
A("s_barrier")
WD = 16
HR = 176
NH = args.hring
ACC2 = 216
def wdreg(i, n): return WD + 20*(i % 8) + 4*n
def wd_reads(i):
    jj, s = i >> 2, i & 3
    sl = WSLOT[jj]
    va = 7 if sl >= 2 else 6
    so = (sl & 1) * STG
    r = []
    for n in range(5):
        for rr in range(2):
            d = wdreg(i, n) + 2*rr
            r.append(f"ds_read_b64_tr_b16 v[{d}:{d+1}], v{va} offset:{so + 5120*s + 32*n + 1280*rr}")
    return r
for i in range(8):
    for r in wd_reads(i): A(r)
A("s_waitcnt lgkmcnt(0)")
A("s_barrier")
stamp(5, VST)
if not args.late: flag_code()
A("s_mov_b32 s66, 0")
A("L_poll:")
A("buffer_load_dword v10, v3, s[32:35], 0 offen sc1\ns_waitcnt vmcnt(0)\nv_cmp_ne_u32 vcc, s65, v10\ns_add_u32 s66, s66, 1")
A(f"s_cmp_eq_u64 vcc, 0\ns_cbranch_scc1 L_go\ns_sleep {args.sleep}\ns_cmp_gt_u32 s66, 0x100000\ns_cbranch_scc0 L_poll")
A("L_go:")
stamp(6, VST)
def hreg(i, mm): return HR + 8*(i % NH) + 4*mm
def h_loads(i):
    jj, s = i >> 2, i & 3
    return [f"buffer_load_dwordx4 v[{hreg(i,mm)}:{hreg(i,mm)+3}], v{4+mm}, s[32:35], s{76+jj} offen offset:{1024*s} sc1" for mm in range(2)]
for i in range(NH):
    for x in h_loads(i): A(x)
for i in range(24):
    issued = min(24, i + NH)
    if i == 4*NCERT - 2:
        A("s_barrier")
    lg = " lgkmcnt(10)" if 8 <= i < 23 else (" lgkmcnt(0)" if i == 23 else "")
    A(f"s_waitcnt vmcnt({2*(issued - i - 1)}){lg}")
    if i == 0: stamp(7, VST)
    if i == 23:
        A("s_barrier")
    rd = wd_reads(i + 2) if 8 <= i + 2 < 24 else []
    k = 0
    for n in range(5):
        for mm in range(2):
            a = ACC2 + 4*(5*mm + n)
            c = "0" if i == 0 else f"v[{a}:{a+3}]"
            A(f"v_mfma_f32_16x16x32_bf16 v[{a}:{a+3}], v[{wdreg(i,n)}:{wdreg(i,n)+3}], v[{hreg(i,mm)}:{hreg(i,mm)+3}], {c}")
            if k < len(rd):
                A(rd[k]); k += 1
    if i + NH < 24:
        for x in h_loads(i + NH): A(x)
stamp(8, VST)
A("s_mul_i32 s46, s38, 5120\nv_add_u32 v10, s46, v8")
A("s_xor_b32 s47, s38, 2\ns_mul_i32 s47, s47, 5120\nv_add_u32 v11, s47, v8")
A("s_nop 4")
A("s_cmp_eq_u32 s41, 0\ns_cbranch_scc0 L_kh1")
for kh in range(2):
    if kh == 1: A("L_kh1:")
    snd = 1 - kh
    for n in range(5):
        a = ACC2 + 4*(5*snd + n)
        A(f"ds_write_b128 v11, v[{a}:{a+3}] offset:{1024*n}")
    A("s_waitcnt lgkmcnt(0)\ns_barrier")
    for n in range(5):
        A(f"ds_read_b128 v[{16+4*n}:{19+4*n}], v10 offset:{1024*n}")
    for n in range(5):
        a = ACC2 + 4*(5*kh + n)
        A(f"s_waitcnt lgkmcnt({4-n})")
        for r in range(4):
            A(f"v_add_f32 v{16+4*n+r}, v{16+4*n+r}, v{a+r}")
        A(f"v_cvt_pk_bf16_f32 v{40+2*n}, v{16+4*n}, v{17+4*n}\nv_cvt_pk_bf16_f32 v{41+2*n}, v{18+4*n}, v{19+4*n}")
        A(f"buffer_store_dwordx2 v[{40+2*n}:{41+2*n}], v9, s[68:71], 0 offen offset:{32*n}")
    if kh == 0:
        A("s_branch L_fin")
A("L_fin:")
stamp(9, VST)
if STAMPS:
    A("s_waitcnt vmcnt(0)")
stamp(10, VST)
store_stamps(VST, 16, 0, "L_st0", 38, 0)
A("s_endpgm")

out.append('.section .rodata,"a"\n.p2align 6')
out.append(f""".amdhsa_kernel {KN}
  .amdhsa_next_free_vgpr 256
  .amdhsa_next_free_sgpr 96
  .amdhsa_accum_offset 256
  .amdhsa_group_segment_fixed_size 0
  .amdhsa_kernarg_size 56
  .amdhsa_user_sgpr_count 2
  .amdhsa_user_sgpr_kernarg_segment_ptr 1
  .amdhsa_system_sgpr_workgroup_id_x 1
.end_amdhsa_kernel""")
print("\n".join(out))
```

```python
import sys, argparse
ap = argparse.ArgumentParser()
ap.add_argument("--stamps", action="store_true")
ap.add_argument("--ser", type=int, default=0)
ap.add_argument("--thr", type=int, default=8)
ap.add_argument("--thr2", type=int, default=6)
ap.add_argument("--wdat", default="9:6,10:5")
ap.add_argument("--n11", type=int, default=40)
ap.add_argument("--chk", type=int, default=8)
ap.add_argument("--cps", default="3,7,9")
ap.add_argument("--sleep", type=int, default=4)
ap.add_argument("--f0at", type=int, default=4, help="F0 goes after this unit's store")
ap.add_argument("--nh", type=int, default=5)
ap.add_argument("--cpf", type=int, default=3, help="blocks per wave, fast WGs (3 -> medium WGs do the rest, 4 -> fast only (15 of 16))")
ap.add_argument("--outflag", default="")
ap.add_argument("--p0early", type=int, default=0)
ap.add_argument("--p1at", type=int, default=0, help="step at whose start the stage-1 poll is issued (-1: with first loads)")
args = ap.parse_args()
STAMPS = args.stamps

out = []
def A(s):
    for l in s.split("\n"):
        out.append("    " + l if l and not l.endswith(":") and not l.startswith(".") and not l.startswith(";") else l)

HDR = open("standalone__glu_gated_glu__prompt.s.ref").read().split("\n")
for l in HDR[:8]:
    out.append(l)
KN = "standalone__glu_gated_glu__prompt_kernel"
out.append(f"; @launch grid=(256,1,1) block=(512,1,1) lds=163840")
A('.amdgcn_target "amdgcn-amd-amdhsa--gfx950"')
A(".text")

FLAG_OFF = 0x700000
WFLAG_OFF = 0x780000
WDP_OFF = 0x800000
STAMP_OFF = 192 << 20
STG = 40960
SPIN = 0x100000
CPS = [int(x) for x in args.cps.split(",")]

def srd(r, lo, hi, size):
    A(f"s_mov_b32 s{r}, s{lo}\ns_mov_b32 s{r+1}, s{hi}\ns_mov_b32 s{r+2}, {size}\ns_mov_b32 s{r+3}, 0x20000")

def stamp(i, vreg):
    if STAMPS:
        A(f"s_memrealtime s[90:91]\ns_waitcnt lgkmcnt(0)\nv_writelane_b32 v{vreg}, s90, {2*i}\nv_writelane_b32 v{vreg}, s91, {2*i+1}")

def store_stamps(vreg, vtmp, rec, label, wave_sreg, wavesel):
    if not STAMPS:
        return
    A(f"s_cmp_lg_u32 s{wave_sreg}, {wavesel}\ns_cbranch_scc1 {label}")
    A(f"s_lshl_b32 s90, s2, 7\ns_add_u32 s90, s90, {STAMP_OFF + rec*256*128}\nv_lshlrev_b32 v{vtmp}, 2, v1\nv_add_u32 v{vtmp}, s90, v{vtmp}")
    A(f"s_mov_b64 exec, 0xffffffff\nbuffer_store_dword v{vreg}, v{vtmp}, s[32:35], 0 offen")
    A(f"{label}:")

A(f".globl {KN}\n.p2align 8\n.type {KN},@function\n{KN}:")
A("s_load_dwordx8 s[4:11], s[0:1], 0")
A("s_load_dwordx4 s[12:15], s[0:1], 32")
A("s_load_dwordx2 s[36:37], s[0:1], 48")
A("s_cmp_ge_u32 s2, 256\ns_cbranch_scc1 L_end")
A("v_and_b32 v1, 63, v0\nv_lshrrev_b32 v2, 6, v0")
A("s_and_b32 s40, s2, 7\ns_lshr_b32 s41, s2, 3")
A("v_readfirstlane_b32 s38, v2")
A("s_and_b32 s60, s40, 1\ns_lshl_b32 s60, s60, 3\ns_and_b32 s42, s41, 7\ns_add_u32 s60, s60, s42")
A("s_lshr_b32 s61, s40, 1\ns_lshl_b32 s61, s61, 2\ns_lshr_b32 s43, s41, 3\ns_add_u32 s61, s61, s43")
A("s_lshl_b32 s64, s61, 1\ns_add_u32 s64, s64, s60\ns_and_b32 s64, s64, 7")
A("s_cmp_lt_u32 s38, 4\ns_cbranch_scc1 L_compute")

def common2():
    A("s_and_b32 s62, s40, 3\ns_lshl_b32 s62, s62, 3\ns_add_u32 s62, s62, s42")
    A("s_lshr_b32 s63, s40, 2\ns_lshl_b32 s63, s63, 2\ns_add_u32 s63, s63, s43")
    A("s_lshr_b32 s44, s64, 2\ns_lshl_b32 s45, s43, 1\ns_add_u32 s45, s45, s44")
    A("s_lshl_b32 s46, s45, 1\ns_and_b32 s47, s64, 1\ns_add_u32 s46, s46, s47\ns_add_u32 s45, s45, 16")
    A("s_bitcmp1_b32 s64, 1\ns_cselect_b32 s67, s45, s46")
    A("s_and_b32 s47, s64, 3\ns_cmp_eq_u32 s47, 3\ns_cselect_b32 s67, 255, s67")
    if args.cpf == 4:
        A("s_cmp_ge_u32 s67, 15\ns_cselect_b32 s67, 255, s67")
NWF = 24 if args.cpf == 3 else 15

A("s_sub_u32 s39, s38, 4")
A("v_lshrrev_b32 v10, 3, v1\nv_and_b32 v11, 7, v1\nv_lshrrev_b32 v12, 4, v1\nv_xor_b32 v13, v11, v12\nv_xor_b32 v14, 4, v13")
A("s_lshl_b32 s46, s60, 7\ns_lshl_b32 s47, s39, 5\ns_add_u32 s46, s46, s47\ns_mul_i32 s46, s46, 1280")
A("v_mul_u32_u24 v10, 1280, v10\nv_add_u32 v10, s46, v10\nv_lshlrev_b32 v13, 4, v13\nv_lshlrev_b32 v14, 4, v14")
A("v_add_u32 v2, v10, v13\nv_add_u32 v3, v10, v14")
A(f"v_add_u32 v4, {2*10240 - 2*1024}, v2\nv_add_u32 v5, {3*10240 - 3*1024}, v3\nv_add_u32 v3, {10240 - 1024}, v3")
A("s_mul_i32 s46, s61, 192\ns_mul_i32 s47, s39, 16*3072\ns_add_u32 s46, s46, s47")
for j in range(3):
    A(f"v_add_u32 v10, {64*j}, v1\nv_mul_u32_u24 v11, 171, v10\nv_lshrrev_b32 v11, 11, v11")
    A("v_mul_u32_u24 v12, 12, v11\nv_sub_u32 v12, v10, v12")
    A("v_mul_u32_u24 v13, 3072, v11\nv_add_u32 v13, s46, v13")
    if j: A(f"v_subrev_u32 v13, {1024*j}, v13")
    A(f"v_lshlrev_b32 v12, 4, v12\nv_and_b32 v14, 8, v11\nv_lshlrev_b32 v14, 2, v14\nv_xor_b32 v12, v12, v14\nv_add_u32 v{6+j}, v13, v12")
A("s_lshl_b32 s48, s39, 12")
A("s_mul_i32 s49, s39, 3072\ns_add_u32 s49, s49, 16384")
A("s_add_u32 s50, s49, 12288")
A("s_mul_i32 s55, s64, 10\ns_lshr_b32 s55, s55, 3")
A("s_waitcnt lgkmcnt(0)")
srd(16, 4, 5, 2621440)
srd(20, 6, 7, 1966080)
srd(24, 8, 9, 1966080)
ops = []
for c in range(10):
    st = (c % 3) * STG
    pre = f"s_add_u32 s56, s55, {c}\ns_sub_u32 s57, s56, 10\ns_cmp_ge_u32 s56, 10\ns_cselect_b32 s56, s57, s56\ns_lshl_b32 s51, s56, 7\ns_mul_i32 s52, s56, 64*3072\n"
    for j in range(4):
        p = (pre + f"s_add_u32 m0, s48, {st}") if j == 0 else ""
        ops.append((c, p, f"buffer_load_dwordx4 v{2+j}, s[16:19], s51 offen offset:{1024*j} lds"))
    for j in range(3):
        p = f"s_add_u32 m0, s49, {st}" if j == 0 else ""
        ops.append((c, p, f"buffer_load_dwordx4 v{6+j}, s[20:23], s52 offen offset:{1024*j} lds"))
    for j in range(3):
        p = f"s_add_u32 m0, s50, {st}" if j == 0 else ""
        ops.append((c, p, f"buffer_load_dwordx4 v{6+j}, s[24:27], s52 offen offset:{1024*j} lds"))
vm = []
def emit_op(op, thr):
    c, p, ins = op
    if p: A(p)
    if len(vm) >= thr:
        A(f"s_waitcnt vmcnt({thr-1})")
    elif p:
        A("s_nop 0")
    A(ins); vm.append(("c", c))
def wait_for(tag):
    last = max(i for i, t in enumerate(vm) if t == tag)
    A(f"s_waitcnt vmcnt({len(vm) - 1 - last})")
for op in ops[:args.thr]:
    emit_op(op, args.thr)
srd(32, 36, 37, 0x10000000)
srd(72, 14, 15, 256)
if STAMPS: A("v_mov_b32 v40, 0")
stamp(0, 40)
common2()
A("s_lshr_b32 s46, s39, 1\ns_mul_i32 s46, s46, 24\ns_and_b32 s47, s39, 1\ns_lshl_b32 s47, s47, 1\ns_add_u32 s46, s46, s47\ns_mul_i32 s47, s63, 48\ns_add_u32 s46, s46, s47\ns_mul_i32 s46, s46, 5120")
A(f"s_add_u32 s46, s46, {WDP_OFF}\nv_lshlrev_b32 v16, 4, v1\nv_add_u32 v16, s46, v16\nv_add_u32 v17, 4096, v16\nv_add_u32 v18, 8192, v16")
A("s_mul_i32 s53, s39, 10240")
A(f"v_min_u32 v19, {NWF-1}, v1\nv_lshlrev_b32 v19, 7, v19\ns_lshl_b32 s46, s63, 12\ns_add_u32 s46, s46, {WFLAG_OFF}\nv_add_u32 v19, s46, v19\nv_mov_b32 v20, 0\nv_mov_b32 v25, 0")
A(f"s_lshl_b32 s46, s40, 5\ns_add_u32 s46, s46, s67\ns_lshl_b32 s46, s46, 7\ns_add_u32 s46, s46, {WFLAG_OFF}")
A("v_and_b32 v27, 31, v1\nv_lshlrev_b32 v27, 2, v27\nv_add_u32 v27, s46, v27")
A("s_cmp_lt_u32 s67, 32\ns_cbranch_scc1 L_w1\nv_mov_b32 v27, -1\nL_w1:\ns_cmp_eq_u32 s39, 0\ns_cbranch_scc1 L_w0\nv_mov_b32 v19, -1\nv_mov_b32 v27, -1\nL_w0:")
WSLOT = [3, 1, 2, 0, 3, 1]
WFREE = [-1, 8, 9, 10, 12, 12]
wdn = [0]; checked = [False]; lastbar = [-1]
def issue_wd_ops(cnt):
    first = True
    for _ in range(cnt):
        g = wdn[0]; wdn[0] += 1
        jj, n = g // 10, g % 10
        assert lastbar[0] >= WFREE[jj], (jj, lastbar[0])
        assert checked[0]
        st = WSLOT[jj] * STG
        if n == 0:
            A(f"s_mov_b32 s58, {jj*20480}")
        if n % 4 == 0 or first:
            A(f"s_add_u32 m0, s53, {st + 4096*(n//4)}")
        first = False
        A(f"s_waitcnt vmcnt({args.thr2 - 1})")
        A(f"buffer_load_dwordx4 v{16 + n//4}, s[32:35], s58 offen offset:{1024*(n%4)} sc1 lds"); vm.append(("w", jj))
WDAT = dict((int(x.split(":")[0]), int(x.split(":")[1])) for x in args.wdat.split(",") if x)
oi = args.thr
def m0_restore():
    if oi < 100 and not ops[oi][1]:
        k = oi
        while not ops[k][1]: k -= 1
        A(ops[k][1].split("\n")[-1])
for c in range(10):
    tgt = min(100, 10*(c + 1) + args.thr)
    while oi < tgt:
        emit_op(ops[oi], args.thr); oi += 1
    if c in WDAT and c == 9:
        issue_wd_ops(WDAT[c])
    wait_for(("c", c))
    if c == args.chk - 1:
        A("buffer_load_dword v26, v19, s[32:35], 0 offen sc1"); vm.append(("f", 0))
    if c == args.chk:
        wait_for(("f", 0))
        A("s_cmp_lg_u32 s39, 0\ns_cbranch_scc1 L_wgo\ns_mov_b32 s66, 0")
        A("L_wchk:")
        A("v_cmp_ne_u32 vcc, s65, v26\ns_add_u32 s66, s66, 1\ns_nop 0")
        A(f"s_cmp_eq_u64 vcc, 0\ns_cbranch_scc1 L_wgo\ns_cmp_gt_u32 s66, {SPIN}\ns_cbranch_scc1 L_wgo\ns_sleep 2")
        A("buffer_load_dword v26, v19, s[32:35], 0 offen sc1\ns_waitcnt vmcnt(0)\ns_branch L_wchk")
        A("L_wgo:")
    if c in WDAT and c != 9:
        issue_wd_ops(WDAT[c]); m0_restore()
    A("s_barrier"); lastbar[0] = c
    if c == args.chk:
        checked[0] = True
    if c == 2:
        A("s_load_dword s65, s[14:15], 0")
    if c == (CPS[2] + 1) // 2:
        A("s_cmp_lg_u32 s39, 0\ns_cbranch_scc1 L_nowf")
        A("s_waitcnt lgkmcnt(0)\ns_mov_b32 s66, 0\ns_cmp_lg_u32 s65, 0\ns_cbranch_scc1 L_wf")
        A("L_wfl:")
        A("buffer_load_dword v25, v20, s[72:75], 0 offen sc1\ns_waitcnt vmcnt(0)\nv_readfirstlane_b32 s65, v25\ns_add_u32 s66, s66, 1")
        A(f"s_cmp_gt_u32 s66, {SPIN}\ns_cbranch_scc1 L_wf\ns_cmp_eq_u32 s65, 0\ns_cbranch_scc1 L_wfl")
        A("L_wf:")
        A("v_mov_b32 v25, s65")
        A("L_nowf:")
        A("buffer_store_dword v25, v27, s[32:35], 0 offen sc1"); vm.append(("g", 0))
    if args.ser: stamp(c + 1, 40)
    elif c in (0, 4, 9): stamp({0: 1, 4: 2, 9: 3}[c], 40)
def lstamp(i):
    if not args.ser: stamp(i, 40)
if 10 in WDAT: issue_wd_ops(WDAT[10])
A("s_barrier"); lastbar[0] = 10
lstamp(7)
issue_wd_ops(args.n11 - wdn[0])
wait_for(("w", 1))
lstamp(4)
A("s_barrier")
NCERT = args.n11 // 10
wait_for(("w", NCERT - 1))
A("s_barrier"); lastbar[0] = 12
lstamp(5)
issue_wd_ops(60 - wdn[0])
A("s_waitcnt vmcnt(0)")
lstamp(6)
A("s_barrier")
store_stamps(40, 41, 1, "L_st1", 39, 0)
A("L_end:")
A("s_endpgm")

A("L_compute:")
common2()
A("s_mov_b32 s59, s40")
A("s_and_b32 s40, s38, 1\ns_lshr_b32 s41, s38, 1")
VX = 2; VW = 6; VH = 12; FR = 16; ACC = 96; T = 192; VST = 15
PF, PP, PH, PT, PL, PO = 208, 209, 210, 212, 214, 215
A(f"v_and_b32 v{T}, 15, v1")
A(f"s_lshl_b32 s42, s40, 6\nv_add_u32 v{T}, s42, v{T}\nv_lshlrev_b32 v{T}, 7, v{T}")
A(f"v_lshrrev_b32 v{T+1}, 4, v1\nv_bfe_u32 v{T+2}, v1, 1, 3\nv_xor_b32 v{T+1}, v{T+1}, v{T+2}")
for ks in range(2):
    A(f"v_xor_b32 v{T+2}, {4*ks}, v{T+1}\nv_lshlrev_b32 v{T+2}, 4, v{T+2}\nv_add_u32 v{VX+ks}, v{T}, v{T+2}\nv_add_u32 v{VX+2+ks}, {2*STG}, v{VX+ks}")
A(f"v_bfe_u32 v{T}, v1, 4, 1\nv_lshrrev_b32 v{T+1}, 4, v1\nv_bfe_u32 v{T+2}, v1, 2, 2\nv_and_b32 v{T+3}, 3, v1")
A(f"v_lshlrev_b32 v{T+1}, 3, v{T+1}\nv_add_u32 v{T+1}, v{T+1}, v{T+2}\nv_mul_u32_u24 v{T+1}, 192, v{T+1}")
A(f"v_lshlrev_b32 v{T+3}, 3, v{T+3}\nv_add_u32 v{T+1}, v{T+1}, v{T+3}\nv_add_u32 v{T+1}, 16384, v{T+1}")
A("s_mul_i32 s42, s41, 3")
for t in range(3):
    A(f"s_add_u32 s43, s42, {t}\nv_xor_b32 v{T+2}, s43, v{T}\nv_lshlrev_b32 v{T+2}, 5, v{T+2}\nv_add_u32 v{VW+t}, v{T+1}, v{T+2}\nv_add_u32 v{VW+3+t}, {2*STG}, v{VW+t}")
A(f"v_lshrrev_b32 v{T}, 5, v1\nv_mul_u32_u24 v{T}, 49152, v{T}\nv_and_b32 v{T+1}, 31, v1\nv_lshlrev_b32 v{T+1}, 4, v{T+1}\nv_add_u32 v{VH}, v{T}, v{T+1}")
A("s_lshl_b32 s44, s60, 3\ns_lshl_b32 s45, s40, 2\ns_add_u32 s44, s44, s45\ns_mul_i32 s44, s44, 49152")
A("s_lshr_b32 s45, s61, 3\ns_mul_i32 s45, s45, 24\ns_and_b32 s46, s61, 7\ns_add_u32 s45, s45, s46\ns_lshl_b32 s45, s45, 10\ns_add_u32 s44, s44, s45\ns_lshl_b32 s45, s41, 9\ns_add_u32 s44, s44, s45")
for t in range(3):
    for mp in range(2):
        A(f"s_add_u32 s{76+2*t+mp}, s44, {8192*t + 98304*mp}")
A("v_mov_b32 v13, 0")
A("s_mov_b32 s82, 0xbfb8aa3b\ns_mov_b32 s83, 0xbfb8aa3b\ns_mov_b32 s84, 1.0\ns_mov_b32 s85, 1.0")
A("s_waitcnt lgkmcnt(0)")
srd(72, 14, 15, 256)
A("s_or_b32 s46, s2, s38\ns_cmp_lg_u32 s46, 0\ns_cbranch_scc1 L_nononce")
A("s_memrealtime s[46:47]\ns_waitcnt lgkmcnt(0)\ns_lshl_b32 s46, s46, 3\ns_or_b32 s46, s46, 4\nv_mov_b32 v14, s46")
A("buffer_store_dword v14, v13, s[72:75], 0 offen sc1")
A("L_nononce:")
srd(32, 36, 37, 0x10000000)
srd(68, 12, 13, 2621440)
srd(28, 10, 11, 1966080)
if STAMPS: A(f"v_mov_b32 v{VST}, 0")
stamp(0, VST)
A("s_lshl_b32 s46, s60, 1\ns_add_u32 s46, s46, s40\ns_lshl_b32 s46, s46, 5\ns_lshl_b32 s47, s61, 1\ns_add_u32 s46, s46, s47\ns_add_u32 s46, s46, s41")
A(f"s_lshl_b32 s46, s46, 7\ns_add_u32 s46, s46, {FLAG_OFF}\nv_and_b32 v{PF}, 31, v1\nv_lshlrev_b32 v{PF}, 2, v{PF}\nv_add_u32 v{PF}, s46, v{PF}")
A(f"s_lshl_b32 s46, s62, 12\ns_lshl_b32 s47, s41, 11\ns_add_u32 s46, s46, s47\ns_add_u32 s46, s46, {FLAG_OFF}")
A(f"v_and_b32 v{PP}, 15, v1\nv_lshlrev_b32 v{PP}, 7, v{PP}\nv_add_u32 v{PP}, s46, v{PP}")
A(f"v_lshlrev_b32 v{PL}, 4, v1")
A("s_lshl_b32 s46, s62, 2\ns_lshl_b32 s47, s40, 1\ns_add_u32 s46, s46, s47\ns_mul_i32 s46, s46, 48\ns_mul_i32 s47, s41, 24\ns_add_u32 s46, s46, s47\ns_lshl_b32 s46, s46, 10")
A(f"v_add_u32 v{PH}, s46, v{PL}\nv_add_u32 v{PH+1}, 49152, v{PH}")
A(f"v_lshrrev_b32 v{T}, 5, v1\nv_lshlrev_b32 v{T}, 4, v{T}\nv_bfe_u32 v{T+1}, v1, 4, 1\nv_lshlrev_b32 v{T+1}, 2, v{T+1}\nv_add_u32 v{T}, v{T}, v{T+1}")
A(f"v_bfe_u32 v{T+1}, v1, 2, 2\nv_add_u32 v{T}, v{T}, v{T+1}\nv_mul_u32_u24 v{T}, 160, v{T}\nv_and_b32 v{T+1}, 3, v1\nv_lshlrev_b32 v{T+1}, 3, v{T+1}\nv_add_u32 v{T}, v{T}, v{T+1}")
A(f"s_mul_i32 s46, s41, 20480\nv_add_u32 v{PT}, s46, v{T}\nv_add_u32 v{PT+1}, {2*STG}, v{PT}")
A(f"v_and_b32 v{PO}, 15, v1\ns_lshl_b32 s46, s62, 6\ns_lshl_b32 s47, s40, 5\ns_add_u32 s46, s46, s47\ns_lshl_b32 s47, s41, 4\ns_add_u32 s46, s46, s47\nv_add_u32 v{PO}, s46, v{PO}\nv_mul_u32_u24 v{PO}, 1280, v{PO}")
A(f"v_lshrrev_b32 v{T}, 4, v1\nv_lshlrev_b32 v{T}, 3, v{T}\nv_add_u32 v{PO}, v{PO}, v{T}\ns_mul_i32 s46, s63, 160\nv_add_u32 v{PO}, s46, v{PO}")
NE = args.cpf
if args.cpf == 3:
    A("s_mul_i32 s46, s67, 12\ns_mul_i32 s47, s38, 3\ns_add_u32 s46, s46, s47")
    A("s_mul_i32 s47, s67, 6\ns_add_u32 s47, s47, 96\ns_lshl_b32 s48, s38, 1\ns_add_u32 s47, s47, s48")
    A("s_cmp_lt_u32 s38, 3\ns_cselect_b32 s54, 2, 0\ns_cmp_lt_u32 s67, 16\ns_cselect_b32 s48, s46, s47\ns_cselect_b32 s54, 3, s54")
    A("s_cmp_lt_u32 s67, 32\ns_cselect_b32 s54, s54, 0\ns_cselect_b32 s48, s48, 0")
else:
    A("s_lshl_b32 s48, s67, 4\ns_lshl_b32 s47, s38, 2\ns_add_u32 s48, s48, s47\ns_cmp_lt_u32 s67, 32\ns_cselect_b32 s54, 4, 0\ns_cselect_b32 s48, s48, 0")
A("s_lshl_b32 s46, s48, 6\ns_mul_i32 s49, s59, 160\ns_mov_b32 s50, 52429")
for e in range(NE):
    A(f"v_add_u32 v{T}, s46, v1")
    if e: A(f"v_add_u32 v{T}, {64*e}, v{T}")
    A(f"v_mul_lo_u32 v{T+1}, v{T}, s50\nv_lshrrev_b32 v{T+1}, 19, v{T+1}")
    A(f"v_mul_u32_u24 v{T+2}, 10, v{T+1}\nv_sub_u32 v{T+2}, v{T}, v{T+2}\nv_lshlrev_b32 v{T+2}, 4, v{T+2}")
    A(f"v_lshrrev_b32 v{T+3}, 5, v{T+1}\nv_subrev_u32 v{T+4}, 24, v{T+3}\nv_cmp_gt_u32 vcc, 24, v{T+3}\nv_mov_b32 v{T+5}, 768\ns_nop 0")
    A(f"v_cndmask_b32 v{T+3}, v{T+4}, v{T+3}, vcc\nv_cndmask_b32 v{T+5}, v{T+5}, v13, vcc")
    A(f"v_and_b32 v{T+4}, 7, v{T+3}\nv_mul_u32_u24 v{T+4}, 96, v{T+4}\nv_add_u32 v{T+5}, v{T+5}, v{T+4}")
    A(f"v_lshrrev_b32 v{T+4}, 3, v{T+3}\nv_lshlrev_b32 v{T+4}, 4, v{T+4}\nv_add_u32 v{T+5}, v{T+5}, v{T+4}")
    A(f"v_bfe_u32 v{T+4}, v{T+1}, 4, 1\nv_mul_u32_u24 v{T+4}, 48, v{T+4}\nv_add_u32 v{T+5}, v{T+5}, v{T+4}")
    A(f"v_and_b32 v{T+4}, 15, v{T+1}\nv_add_u32 v{T+5}, v{T+5}, v{T+4}")
    A(f"v_mul_u32_u24 v{T+5}, 1280, v{T+5}\nv_add_u32 v{249+e}, v{T+5}, v{T+2}")
A(f"s_mul_i32 s50, s59, 240\ns_add_u32 s50, s50, s48\ns_lshl_b32 s50, s50, 10\ns_add_u32 s50, s50, {WDP_OFF}")

def xreg(s, mi): return FR + 40*(s & 1) + 4*mi
def wreg(s, t, u): return FR + 40*(s & 1) + 16 + 4*(2*t + u)
def reads(s):
    c, ks = s >> 1, s & 1
    st = c % 3
    hi = 1 if st >= 2 else 0
    so = (st & 1) * STG
    r = []
    def rw(t, u):
        for rr in range(2):
            d = wreg(s, t, u) + 2*rr
            r.append(f"ds_read_b64_tr_b16 v[{d}:{d+1}], v{VW+3*hi+t} offset:{so + 6144*ks + 768*rr + 12288*u}")
    def rx(mi):
        d = xreg(s, mi)
        r.append(f"ds_read_b128 v[{d}:{d+3}], v{VX+2*hi+ks} offset:{so + 2048*mi}")
    rw(0, 0); rx(0); rx(1); rx(2); rx(3); rw(0, 1); rw(1, 0); rw(1, 1); rw(2, 0); rw(2, 1)
    return r
def mfma(s, mi, t, u):
    a = ACC + 4*((mi*3 + t)*2 + u)
    wa, xa = wreg(s, t, u), xreg(s, mi)
    c = "0" if s == 0 else f"v[{a}:{a+3}]"
    return f"v_mfma_f32_16x16x32_bf16 v[{a}:{a+3}], v[{wa}:{wa+3}], v[{xa}:{xa+3}], {c}"
def mfmas(s):
    return [mfma(s, mi, t, u) for t in range(3) for u in range(2) for mi in range(4)]
A("s_barrier")
stamp(1, VST)
for r in reads(0):
    A(r)
for s in range(18):
    m = mfmas(s)
    nx = reads(s + 1)
    A("s_waitcnt lgkmcnt(0)")
    i0 = 0
    if s & 1:
        for x in m[:4]: A(x)
        if s == CPS[2]: A("s_waitcnt vmcnt(0)")
        A("s_barrier")
        if s == CPS[0]:
            for e in range(NE):
                A(f"s_cmp_le_u32 s54, {e}\ns_cbranch_scc1 L_nocp1")
                A(f"buffer_load_dwordx4 v[{224+4*e}:{227+4*e}], v{249+e}, s[28:31], s49 offen")
            A("L_nocp1:")
        if s == CPS[1]:
            A("s_waitcnt vmcnt(0)")
            for e in range(NE):
                A(f"s_cmp_le_u32 s54, {e}\ns_cbranch_scc1 L_nocp2")
                A(f"buffer_store_dwordx4 v[{224+4*e}:{227+4*e}], v{PL}, s[32:35], s50 offen offset:{1024*e} sc1")
            A("L_nocp2:")
        if s == 17:
            A("s_load_dword s65, s[14:15], 0")
        i0 = 4
    k = 0
    for i in range(i0, 24):
        A(m[i])
        if k < 16:
            A(nx[k]); k += 1
for r in reads(19):
    A(r)
units = [(t, mp) for t in range(3) for mp in range(2)]
def epi(k):
    t, mp = units[k]
    o = 224 + 4*k
    TT = T + 8*(k & 1)
    e = []
    ga = [ACC + 4*(((2*mp + (j >> 2))*3 + t)*2 + 0) + (j & 3) for j in range(8)]
    ua = [ACC + 4*(((2*mp + (j >> 2))*3 + t)*2 + 1) + (j & 3) for j in range(8)]
    for j in range(0, 8, 2): e.append(f"v_pk_mul_f32 v[{TT+j}:{TT+j+1}], v[{ga[j]}:{ga[j]+1}], s[82:83]")
    for j in range(8): e.append(f"v_exp_f32 v{TT+j}, v{TT+j}")
    for j in range(0, 8, 2): e.append(f"v_pk_add_f32 v[{TT+j}:{TT+j+1}], v[{TT+j}:{TT+j+1}], s[84:85]")
    for j in range(8): e.append(f"v_rcp_f32 v{TT+j}, v{TT+j}")
    for j in range(0, 8, 2): e.append(f"v_pk_mul_f32 v[{TT+j}:{TT+j+1}], v[{TT+j}:{TT+j+1}], v[{ua[j]}:{ua[j]+1}]")
    for j in range(4): e.append(f"v_cvt_pk_bf16_f32 v{o+j}, v{TT+2*j}, v{TT+2*j+1}")
    e.append("s_nop 1")
    e.append(f"v_permlane32_swap_b32 v{o}, v{o+2}")
    e.append(f"v_permlane32_swap_b32 v{o+1}, v{o+3}")
    e.append(f"buffer_store_dwordx4 v[{o}:{o+3}], v{VH}, s[32:35], s{76+2*t+mp} offen sc1")
    return e
A("s_waitcnt lgkmcnt(0)")
A("s_barrier")
stamp(2, VST)
mstream = [mfma(s, 2*mp + mm, t, u) for (t, mp) in units for s in (18, 19) for u in range(2) for mm in range(2)]
for x in mstream[:8]:
    A(x)
A("s_mov_b32 s66, 0\ns_cmp_lg_u32 s65, 0\ns_cbranch_scc1 L_havenonce")
A("L_nloop:")
A("buffer_load_dword v14, v13, s[72:75], 0 offen sc1\ns_waitcnt vmcnt(0)\nv_readfirstlane_b32 s65, v14\ns_add_u32 s66, s66, 1")
A(f"s_cmp_gt_u32 s66, {SPIN}\ns_cbranch_scc1 L_havenonce\ns_cmp_eq_u32 s65, 0\ns_cbranch_scc1 L_nloop")
A("L_havenonce:")
A("s_mov_b32 s86, 0\ns_mov_b32 s87, 0x20000\ns_mov_b32 s88, 0x40000")
A("v_mov_b32 v2, s65")
for x in mstream[8:16]:
    A(x)
rem = mstream[16:]
cv = []
def cwait(tag):
    last = max(i for i, t in enumerate(cv) if t == tag)
    return len(cv) - 1 - last
def flag(stage):
    A(f"s_waitcnt vmcnt({cwait(('st', 2*stage + 1))})")
    A(f"buffer_store_dword v2, v{PF}, s[32:35], s{86+stage} offen sc1"); cv.append(("fl", stage))
for k in range(6):
    e = epi(k)
    ms = rem[8*k:8*k+8]
    pos = [1, 4, 7, 10, 13, 16, 19, 22]
    for i, x in enumerate(e):
        if ms and i in pos:
            A(ms[pos.index(i)])
        A(x)
    cv.append(("st", k))
    if k == args.f0at: flag(0)
stamp(3, VST)
flag(1)
A("s_barrier")
WD = 16
HRL = [176, 184, 192, 200, 6][:args.nh]
NH = len(HRL)
ACC2 = 216
def wdreg(i, n): return WD + 20*(i % 8) + 4*n
def wd_reads(i):
    jj, s = i >> 2, i & 3
    sl = WSLOT[jj]
    va = PT + 1 if sl >= 2 else PT
    so = (sl & 1) * STG
    r = []
    for n in range(5):
        for rr in range(2):
            d = wdreg(i, n) + 2*rr
            r.append(f"ds_read_b64_tr_b16 v[{d}:{d+1}], v{va} offset:{so + 5120*s + 32*n + 1280*rr}")
    return r
for i in range(8):
    for r in wd_reads(i): A(r)
flag(2)
stamp(4, VST)
if args.p0early: A(f"buffer_load_dword v5, v{PP}, s[32:35], s86 offen sc1"); cv.append(("p", 0))
A("s_waitcnt lgkmcnt(0)")
A("s_barrier")
stamp(5, VST)
def check(stage):
    A("s_mov_b32 s66, 0")
    A(f"L_chk{stage}:")
    A(f"v_cmp_ne_u32 vcc, s65, v5\ns_add_u32 s66, s66, 1\ns_nop 0")
    A(f"s_cmp_eq_u64 vcc, 0\ns_cbranch_scc1 L_go{stage}\ns_cmp_gt_u32 s66, {SPIN}\ns_cbranch_scc1 L_go{stage}\ns_sleep {args.sleep}")
    A(f"buffer_load_dword v5, v{PP}, s[32:35], s{86+stage} offen sc1\ns_waitcnt vmcnt(0)\ns_branch L_chk{stage}")
    A(f"L_go{stage}:")
if not args.p0early: A(f"buffer_load_dword v5, v{PP}, s[32:35], s86 offen sc1"); cv.append(("p", 0))
A("s_waitcnt vmcnt(0)")
check(0)
stamp(6, VST)
def hreg(i, mm): return HRL[i % NH] + 4*mm
def h_loads(i):
    jj, s = i >> 2, i & 3
    if s == 0: A(f"s_mov_b32 s58, {4096*jj}")
    for mm in range(2):
        A(f"buffer_load_dwordx4 v[{hreg(i,mm)}:{hreg(i,mm)+3}], v{PH+mm}, s[32:35], s58 offen offset:{1024*s} sc1"); cv.append(("h", i))
def poll(stage):
    A(f"buffer_load_dword v5, v{PP}, s[32:35], s{86+stage} offen sc1"); cv.append(("p", len(cv)))
    return cv[-1]
for i in range(NH):
    h_loads(i)
if args.p1at < 0: ptag = poll(1)
for i in range(24):
    if i == 4*NCERT - 2:
        A("s_barrier")
    lg = " lgkmcnt(10)" if 8 <= i < 23 else (" lgkmcnt(0)" if i == 23 else "")
    A(f"s_waitcnt vmcnt({cwait(('h', i))}){lg}")
    if i == 0: stamp(7, VST)
    if i == args.p1at: ptag = poll(1)
    if i == 23:
        A("s_barrier")
    rd = wd_reads(i + 2) if 8 <= i + 2 < 24 else []
    k = 0
    for n in range(5):
        for mm in range(2):
            a = ACC2 + 4*(5*mm + n)
            c = "0" if i == 0 else f"v[{a}:{a+3}]"
            A(f"v_mfma_f32_16x16x32_bf16 v[{a}:{a+3}], v[{wdreg(i,n)}:{wdreg(i,n)+3}], v[{hreg(i,mm)}:{hreg(i,mm)+3}], {c}")
            if k < len(rd):
                A(rd[k]); k += 1
    j = i + NH
    if j < 24:
        if j % 8 == 0:
            A(f"s_waitcnt vmcnt({cwait(ptag)})")
            check(j // 8)
        h_loads(j)
        if j == 16 - NH:
            ptag = poll(2)
stamp(8, VST)
A(f"s_mul_i32 s46, s38, 5120\nv_add_u32 v10, s46, v{PL}")
A(f"s_xor_b32 s47, s38, 2\ns_mul_i32 s47, s47, 5120\nv_add_u32 v11, s47, v{PL}")
A("s_nop 4")
A("s_cmp_eq_u32 s41, 0\ns_cbranch_scc0 L_kh1")
OF = (" " + args.outflag) if args.outflag else ""
for kh in range(2):
    if kh == 1: A("L_kh1:")
    snd = 1 - kh
    for n in range(5):
        a = ACC2 + 4*(5*snd + n)
        A(f"ds_write_b128 v11, v[{a}:{a+3}] offset:{1024*n}")
    A("s_waitcnt lgkmcnt(0)\ns_barrier")
    for n in range(5):
        A(f"ds_read_b128 v[{16+4*n}:{19+4*n}], v10 offset:{1024*n}")
    for n in range(5):
        a = ACC2 + 4*(5*kh + n)
        A(f"s_waitcnt lgkmcnt({4-n})")
        for r in range(4):
            A(f"v_add_f32 v{16+4*n+r}, v{16+4*n+r}, v{a+r}")
        A(f"v_cvt_pk_bf16_f32 v{40+2*n}, v{16+4*n}, v{17+4*n}\nv_cvt_pk_bf16_f32 v{41+2*n}, v{18+4*n}, v{19+4*n}")
        A(f"buffer_store_dwordx2 v[{40+2*n}:{41+2*n}], v{PO}, s[68:71], 0 offen offset:{32*n}{OF}")
    if kh == 0:
        A("s_branch L_fin")
A("L_fin:")
stamp(9, VST)
if STAMPS:
    A("s_waitcnt vmcnt(0)")
stamp(10, VST)
store_stamps(VST, 16, 0, "L_st0", 38, 0)
A("s_endpgm")

out.append('.section .rodata,"a"\n.p2align 6')
out.append(f""".amdhsa_kernel {KN}
  .amdhsa_next_free_vgpr 256
  .amdhsa_next_free_sgpr 96
  .amdhsa_accum_offset 256
  .amdhsa_group_segment_fixed_size 0
  .amdhsa_kernarg_size 56
  .amdhsa_user_sgpr_count 2
  .amdhsa_user_sgpr_kernarg_segment_ptr 1
  .amdhsa_system_sgpr_workgroup_id_x 1
.end_amdhsa_kernel""")
print("\n".join(out))
```

```python
import sys, argparse
ap = argparse.ArgumentParser()
ap.add_argument("--stamps", action="store_true")
ap.add_argument("--ser", type=int, default=0)
ap.add_argument("--thr", type=int, default=10)
ap.add_argument("--thr2", type=int, default=6)
ap.add_argument("--wdat", default="9:6,10:5")
ap.add_argument("--n11", type=int, default=40)
ap.add_argument("--chk", type=int, default=8)
ap.add_argument("--cps", default="4,6,9")
ap.add_argument("--sleep", type=int, default=4)
ap.add_argument("--f0at", type=int, default=4, help="F0 goes after this unit's store")
ap.add_argument("--nh", type=int, default=5)
ap.add_argument("--cpf", type=int, default=3, help="blocks per wave, fast WGs (3 -> medium WGs do the rest, 4 -> fast only (15 of 16))")
ap.add_argument("--outflag", default="")
ap.add_argument("--pollmode", default="sc1")
ap.add_argument("--cbar", type=int, default=0, help="stamp C around barriers at steps 13,17 into 11..14")
ap.add_argument("--swp", type=int, default=0, help="pairwise chunk swap by parity in phase 2")
ap.add_argument("--lprio", type=int, default=0)
ap.add_argument("--cprio", type=int, default=0)
ap.add_argument("--cpos", type=int, default=16, help="mfma index inside the step after which copy ops are placed (-1: right after barrier)")
ap.add_argument("--snake", type=int, default=0)
ap.add_argument("--thr3", type=int, default=0, help="throttle for Wd ops after B12 (0: same as thr2)")
ap.add_argument("--probe", default="", help="i,j : C waves spin at the end for (t_j - t_i) [diagnostic]")
ap.add_argument("--p0early", type=int, default=0)
ap.add_argument("--p1at", type=int, default=0, help="step at whose start the stage-1 poll is issued (-1: with first loads)")
args = ap.parse_args()
STAMPS = args.stamps

out = []
def A(s):
    for l in s.split("\n"):
        out.append("    " + l if l and not l.endswith(":") and not l.startswith(".") and not l.startswith(";") else l)

HDR = open("standalone__glu_gated_glu__prompt.s.ref").read().split("\n")
for l in HDR[:8]:
    out.append(l)
KN = "standalone__glu_gated_glu__prompt_kernel"
out.append(f"; @launch grid=(256,1,1) block=(512,1,1) lds=163840")
A('.amdgcn_target "amdgcn-amd-amdhsa--gfx950"')
A(".text")

FLAG_OFF = 0x700000
WFLAG_OFF = 0x780000
WDP_OFF = 0x800000
STAMP_OFF = 192 << 20
STG = 40960
SPIN = 0x100000
CPS = [int(x) for x in args.cps.split(",")]

def srd(r, lo, hi, size):
    A(f"s_mov_b32 s{r}, s{lo}\ns_mov_b32 s{r+1}, s{hi}\ns_mov_b32 s{r+2}, {size}\ns_mov_b32 s{r+3}, 0x20000")

PROBE = [int(x) for x in args.probe.split(",")] if args.probe else []
def POLL(sreg):
    if args.pollmode == "atomic":
        return f"v_mov_b32 v5, s65\ns_mov_b64 exec, 0xffff\nv_mov_b32 v5, 0\nbuffer_atomic_or v5, v209, s[32:35], s{sreg} offen sc0 sc1\ns_mov_b64 exec, -1"
    return f"buffer_load_dword v5, v209, s[32:35], s{sreg} offen {args.pollmode}"
def stamp(i, vreg):
    if PROBE and vreg == 15 and i in PROBE:
        r = 92 + 2*PROBE.index(i)
        A(f"s_memrealtime s[{r}:{r+1}]\ns_waitcnt lgkmcnt(0)")
    if STAMPS:
        A(f"s_memrealtime s[90:91]\ns_waitcnt lgkmcnt(0)\nv_writelane_b32 v{vreg}, s90, {2*i}\nv_writelane_b32 v{vreg}, s91, {2*i+1}")

def store_stamps(vreg, vtmp, rec, label, wave_sreg, wavesel):
    if not STAMPS:
        return
    A(f"s_cmp_lg_u32 s{wave_sreg}, {wavesel}\ns_cbranch_scc1 {label}")
    A(f"s_lshl_b32 s90, s2, 7\ns_add_u32 s90, s90, {STAMP_OFF + rec*256*128}\nv_lshlrev_b32 v{vtmp}, 2, v1\nv_add_u32 v{vtmp}, s90, v{vtmp}")
    A(f"s_mov_b64 exec, 0xffffffff\nbuffer_store_dword v{vreg}, v{vtmp}, s[32:35], 0 offen")
    A(f"{label}:")

A(f".globl {KN}\n.p2align 8\n.type {KN},@function\n{KN}:")
A("s_load_dwordx8 s[4:11], s[0:1], 0")
A("s_load_dwordx4 s[12:15], s[0:1], 32")
A("s_load_dwordx2 s[36:37], s[0:1], 48")
A("s_cmp_ge_u32 s2, 256\ns_cbranch_scc1 L_end")
if PROBE and PROBE[0] == -1: A("s_memrealtime s[92:93]")
A("v_and_b32 v1, 63, v0\nv_lshrrev_b32 v2, 6, v0")
A("s_and_b32 s40, s2, 7\ns_lshr_b32 s41, s2, 3")
A("v_readfirstlane_b32 s38, v2")
A("s_and_b32 s60, s40, 1\ns_lshl_b32 s60, s60, 3\ns_and_b32 s42, s41, 7\ns_add_u32 s60, s60, s42")
A("s_lshr_b32 s61, s40, 1\ns_lshl_b32 s61, s61, 2\ns_lshr_b32 s43, s41, 3\ns_add_u32 s61, s61, s43")
A("s_lshl_b32 s64, s61, 1\ns_add_u32 s64, s64, s60\ns_and_b32 s64, s64, 7")
A("s_cmp_lt_u32 s38, 4\ns_cbranch_scc1 L_compute")

def common2():
    A("s_and_b32 s62, s40, 3\ns_lshl_b32 s62, s62, 3\ns_add_u32 s62, s62, s42")
    A("s_lshr_b32 s63, s40, 2\ns_lshl_b32 s63, s63, 2\ns_add_u32 s63, s63, s43")
    A("s_lshr_b32 s44, s64, 2\ns_lshl_b32 s45, s43, 1\ns_add_u32 s45, s45, s44")
    A("s_lshl_b32 s46, s45, 1\ns_and_b32 s47, s64, 1\ns_add_u32 s46, s46, s47\ns_add_u32 s45, s45, 16")
    A("s_bitcmp1_b32 s64, 1\ns_cselect_b32 s67, s45, s46")
    A("s_and_b32 s47, s64, 3\ns_cmp_eq_u32 s47, 3\ns_cselect_b32 s67, 255, s67")
    if args.cpf == 4:
        A("s_cmp_ge_u32 s67, 15\ns_cselect_b32 s67, 255, s67")
    if args.swp: A("s_add_u32 s89, s62, s63\ns_and_b32 s89, s89, 1")
    else: A("s_mov_b32 s89, 0")
NWF = 24 if args.cpf == 3 else 15

A("s_sub_u32 s39, s38, 4")
if args.lprio: A(f"s_setprio {args.lprio}")
A("v_lshrrev_b32 v10, 3, v1\nv_and_b32 v11, 7, v1\nv_lshrrev_b32 v12, 4, v1\nv_xor_b32 v13, v11, v12\nv_xor_b32 v14, 4, v13")
A("s_lshl_b32 s46, s60, 7\ns_lshl_b32 s47, s39, 5\ns_add_u32 s46, s46, s47\ns_mul_i32 s46, s46, 1280")
A("v_mul_u32_u24 v10, 1280, v10\nv_add_u32 v10, s46, v10\nv_lshlrev_b32 v13, 4, v13\nv_lshlrev_b32 v14, 4, v14")
A("v_add_u32 v2, v10, v13\nv_add_u32 v3, v10, v14")
A(f"v_add_u32 v4, {2*10240 - 2*1024}, v2\nv_add_u32 v5, {3*10240 - 3*1024}, v3\nv_add_u32 v3, {10240 - 1024}, v3")
A("s_mul_i32 s46, s61, 192\ns_mul_i32 s47, s39, 16*3072\ns_add_u32 s46, s46, s47")
for j in range(3):
    A(f"v_add_u32 v10, {64*j}, v1\nv_mul_u32_u24 v11, 171, v10\nv_lshrrev_b32 v11, 11, v11")
    A("v_mul_u32_u24 v12, 12, v11\nv_sub_u32 v12, v10, v12")
    A("v_mul_u32_u24 v13, 3072, v11\nv_add_u32 v13, s46, v13")
    if j: A(f"v_subrev_u32 v13, {1024*j}, v13")
    A(f"v_lshlrev_b32 v12, 4, v12\nv_and_b32 v14, 8, v11\nv_lshlrev_b32 v14, 2, v14\nv_xor_b32 v12, v12, v14\nv_add_u32 v{6+j}, v13, v12")
A("s_lshl_b32 s48, s39, 12")
A("s_mul_i32 s49, s39, 3072\ns_add_u32 s49, s49, 16384")
A("s_add_u32 s50, s49, 12288")
A("s_mul_i32 s55, s64, 10\ns_lshr_b32 s55, s55, 3")
A("s_waitcnt lgkmcnt(0)")
srd(16, 4, 5, 2621440)
srd(20, 6, 7, 1966080)
srd(24, 8, 9, 1966080)
ops = []
for c in range(10):
    st = (c % 3) * STG
    pre = f"s_add_u32 s56, s55, {c}\ns_sub_u32 s57, s56, 10\ns_cmp_ge_u32 s56, 10\ns_cselect_b32 s56, s57, s56\ns_lshl_b32 s51, s56, 7\ns_mul_i32 s52, s56, 64*3072\n"
    for j in range(4):
        p = (pre + f"s_add_u32 m0, s48, {st}") if j == 0 else ""
        ops.append((c, p, f"buffer_load_dwordx4 v{2+j}, s[16:19], s51 offen offset:{1024*j} lds"))
    for j in range(3):
        p = f"s_add_u32 m0, s49, {st}" if j == 0 else ""
        ops.append((c, p, f"buffer_load_dwordx4 v{6+j}, s[20:23], s52 offen offset:{1024*j} lds"))
    for j in range(3):
        p = f"s_add_u32 m0, s50, {st}" if j == 0 else ""
        ops.append((c, p, f"buffer_load_dwordx4 v{6+j}, s[24:27], s52 offen offset:{1024*j} lds"))
vm = []
def emit_op(op, thr):
    c, p, ins = op
    if p: A(p)
    if len(vm) >= thr:
        A(f"s_waitcnt vmcnt({thr-1})")
    elif p:
        A("s_nop 0")
    A(ins); vm.append(("c", c))
def wait_for(tag):
    last = max(i for i, t in enumerate(vm) if t == tag)
    A(f"s_waitcnt vmcnt({len(vm) - 1 - last})")
for op in ops[:args.thr]:
    emit_op(op, args.thr)
srd(32, 36, 37, 0x10000000)
srd(72, 14, 15, 256)
if STAMPS: A("v_mov_b32 v40, 0")
stamp(0, 40)
common2()
A("s_lshr_b32 s46, s39, 1\ns_mul_i32 s46, s46, 24\ns_and_b32 s47, s39, 1\ns_lshl_b32 s47, s47, 1\ns_add_u32 s46, s46, s47\ns_mul_i32 s47, s63, 48\ns_add_u32 s46, s46, s47\ns_mul_i32 s46, s46, 5120")
A(f"s_add_u32 s46, s46, {WDP_OFF}\nv_lshlrev_b32 v16, 4, v1\nv_add_u32 v16, s46, v16\nv_add_u32 v17, 4096, v16\nv_add_u32 v18, 8192, v16")
A("s_mul_i32 s53, s39, 10240")
A(f"v_min_u32 v19, {NWF-1}, v1\nv_lshlrev_b32 v19, 7, v19\ns_lshl_b32 s46, s63, 12\ns_add_u32 s46, s46, {WFLAG_OFF}\nv_add_u32 v19, s46, v19\nv_mov_b32 v20, 0\nv_mov_b32 v25, 0")
A(f"s_lshl_b32 s46, s40, 5\ns_add_u32 s46, s46, s67\ns_lshl_b32 s46, s46, 7\ns_add_u32 s46, s46, {WFLAG_OFF}")
A("v_and_b32 v27, 31, v1\nv_lshlrev_b32 v27, 2, v27\nv_add_u32 v27, s46, v27")
A("s_cmp_lt_u32 s67, 32\ns_cbranch_scc1 L_w1\nv_mov_b32 v27, -1\nL_w1:\ns_cmp_eq_u32 s39, 0\ns_cbranch_scc1 L_w0\nv_mov_b32 v19, -1\nv_mov_b32 v27, -1\nL_w0:")
WSLOT = [3, 1, 2, 0, 3, 1]
WFREE = [-1, 8, 9, 10, 12, 12]
wdn = [0]; checked = [False]; lastbar = [-1]
def issue_wd_ops(cnt):
    first = True
    for _ in range(cnt):
        g = wdn[0]; wdn[0] += 1
        jj, n = g // 10, g % 10
        assert lastbar[0] >= WFREE[jj], (jj, lastbar[0])
        assert checked[0]
        st = WSLOT[jj] * STG
        if n == 0:
            A(f"s_xor_b32 s58, s89, {jj}\ns_mul_i32 s58, s58, 20480")
        if n % 4 == 0 or first:
            A(f"s_add_u32 m0, s53, {st + 4096*(n//4)}")
        first = False
        A(f"s_waitcnt vmcnt({(args.thr3 if (args.thr3 and lastbar[0] >= 12) else args.thr2) - 1})")
        A(f"buffer_load_dwordx4 v{16 + n//4}, s[32:35], s58 offen offset:{1024*(n%4)} sc1 lds"); vm.append(("w", jj))
WDAT = dict((int(x.split(":")[0]), int(x.split(":")[1])) for x in args.wdat.split(",") if x)
oi = args.thr
def m0_restore():
    if oi < 100 and not ops[oi][1]:
        k = oi
        while not ops[k][1]: k -= 1
        A(ops[k][1].split("\n")[-1])
for c in range(10):
    tgt = min(100, 10*(c + 1) + args.thr)
    while oi < tgt:
        emit_op(ops[oi], args.thr); oi += 1
    if c in WDAT and c == 9:
        issue_wd_ops(WDAT[c])
    wait_for(("c", c))
    if c == args.chk - 1:
        A("buffer_load_dword v26, v19, s[32:35], 0 offen sc1"); vm.append(("f", 0))
    if c == args.chk:
        wait_for(("f", 0))
        A("s_cmp_lg_u32 s39, 0\ns_cbranch_scc1 L_wgo\ns_mov_b32 s66, 0")
        A("L_wchk:")
        A("v_cmp_ne_u32 vcc, s65, v26\ns_add_u32 s66, s66, 1\ns_nop 0")
        A(f"s_cmp_eq_u64 vcc, 0\ns_cbranch_scc1 L_wgo\ns_cmp_gt_u32 s66, {SPIN}\ns_cbranch_scc1 L_wgo\ns_sleep 2")
        A("buffer_load_dword v26, v19, s[32:35], 0 offen sc1\ns_waitcnt vmcnt(0)\ns_branch L_wchk")
        A("L_wgo:")
    if c in WDAT and c != 9:
        issue_wd_ops(WDAT[c]); m0_restore()
    A("s_barrier"); lastbar[0] = c
    if c == args.chk:
        checked[0] = True
    if c == 2:
        A("s_load_dword s65, s[14:15], 0")
    if c == (CPS[2] + 1) // 2:
        A("s_cmp_lg_u32 s39, 0\ns_cbranch_scc1 L_nowf")
        A("s_waitcnt lgkmcnt(0)\ns_mov_b32 s66, 0\ns_cmp_lg_u32 s65, 0\ns_cbranch_scc1 L_wf")
        A("L_wfl:")
        A("buffer_load_dword v25, v20, s[72:75], 0 offen sc1\ns_waitcnt vmcnt(0)\nv_readfirstlane_b32 s65, v25\ns_add_u32 s66, s66, 1")
        A(f"s_cmp_gt_u32 s66, {SPIN}\ns_cbranch_scc1 L_wf\ns_cmp_eq_u32 s65, 0\ns_cbranch_scc1 L_wfl")
        A("L_wf:")
        A("v_mov_b32 v25, s65")
        A("L_nowf:")
        A("buffer_store_dword v25, v27, s[32:35], 0 offen sc1"); vm.append(("g", 0))
    if args.ser: stamp(c + 1, 40)
    elif c in (0, 4, 9): stamp({0: 1, 4: 2, 9: 3}[c], 40)
def lstamp(i):
    if not args.ser: stamp(i, 40)
if 10 in WDAT: issue_wd_ops(WDAT[10])
A("s_barrier"); lastbar[0] = 10
lstamp(7)
issue_wd_ops(args.n11 - wdn[0])
wait_for(("w", 1))
lstamp(4)
A("s_barrier")
NCERT = args.n11 // 10
wait_for(("w", NCERT - 1))
A("s_barrier"); lastbar[0] = 12
lstamp(5)
issue_wd_ops(60 - wdn[0])
A("s_waitcnt vmcnt(0)")
lstamp(6)
A("s_barrier")
store_stamps(40, 41, 1, "L_st1", 39, 0)
A("L_end:")
A("s_endpgm")

A("L_compute:")
if args.cprio: A(f"s_setprio {args.cprio}")
common2()
A("s_mov_b32 s59, s40")
A("s_and_b32 s40, s38, 1\ns_lshr_b32 s41, s38, 1")
VX = 2; VW = 6; VH = 12; FR = 16; ACC = 96; T = 192; VST = 15
PF, PP, PH, PT, PL, PO = 208, 209, 210, 212, 214, 215
A(f"v_and_b32 v{T}, 15, v1")
A(f"s_lshl_b32 s42, s40, 6\nv_add_u32 v{T}, s42, v{T}\nv_lshlrev_b32 v{T}, 7, v{T}")
A(f"v_lshrrev_b32 v{T+1}, 4, v1\nv_bfe_u32 v{T+2}, v1, 1, 3\nv_xor_b32 v{T+1}, v{T+1}, v{T+2}")
for ks in range(2):
    A(f"v_xor_b32 v{T+2}, {4*ks}, v{T+1}\nv_lshlrev_b32 v{T+2}, 4, v{T+2}\nv_add_u32 v{VX+ks}, v{T}, v{T+2}\nv_add_u32 v{VX+2+ks}, {2*STG}, v{VX+ks}")
A(f"v_bfe_u32 v{T}, v1, 4, 1\nv_lshrrev_b32 v{T+1}, 4, v1\nv_bfe_u32 v{T+2}, v1, 2, 2\nv_and_b32 v{T+3}, 3, v1")
A(f"v_lshlrev_b32 v{T+1}, 3, v{T+1}\nv_add_u32 v{T+1}, v{T+1}, v{T+2}\nv_mul_u32_u24 v{T+1}, 192, v{T+1}")
A(f"v_lshlrev_b32 v{T+3}, 3, v{T+3}\nv_add_u32 v{T+1}, v{T+1}, v{T+3}\nv_add_u32 v{T+1}, 16384, v{T+1}")
A("s_mul_i32 s42, s41, 3")
for t in range(3):
    A(f"s_add_u32 s43, s42, {t}\nv_xor_b32 v{T+2}, s43, v{T}\nv_lshlrev_b32 v{T+2}, 5, v{T+2}\nv_add_u32 v{VW+t}, v{T+1}, v{T+2}\nv_add_u32 v{VW+3+t}, {2*STG}, v{VW+t}")
A(f"v_lshrrev_b32 v{T}, 5, v1\nv_mul_u32_u24 v{T}, 49152, v{T}\nv_and_b32 v{T+1}, 31, v1\nv_lshlrev_b32 v{T+1}, 4, v{T+1}\nv_add_u32 v{VH}, v{T}, v{T+1}")
A("s_lshl_b32 s44, s60, 3\ns_lshl_b32 s45, s40, 2\ns_add_u32 s44, s44, s45\ns_mul_i32 s44, s44, 49152")
A("s_lshr_b32 s45, s61, 3\ns_mul_i32 s45, s45, 24\ns_and_b32 s46, s61, 7\ns_add_u32 s45, s45, s46\ns_lshl_b32 s45, s45, 10\ns_add_u32 s44, s44, s45\ns_lshl_b32 s45, s41, 9\ns_add_u32 s44, s44, s45")
for t in range(3):
    for mp in range(2):
        A(f"s_add_u32 s{76+2*t+mp}, s44, {8192*t + 98304*mp}")
A("v_mov_b32 v13, 0")
A("s_mov_b32 s82, 0xbfb8aa3b\ns_mov_b32 s83, 0xbfb8aa3b\ns_mov_b32 s84, 1.0\ns_mov_b32 s85, 1.0")
A("s_waitcnt lgkmcnt(0)")
srd(72, 14, 15, 256)
A("s_or_b32 s46, s2, s38\ns_cmp_lg_u32 s46, 0\ns_cbranch_scc1 L_nononce")
A("s_memrealtime s[46:47]\ns_waitcnt lgkmcnt(0)\ns_lshl_b32 s46, s46, 3\ns_or_b32 s46, s46, 4\nv_mov_b32 v14, s46")
A("buffer_store_dword v14, v13, s[72:75], 0 offen sc1")
A("L_nononce:")
srd(32, 36, 37, 0x10000000)
srd(68, 12, 13, 2621440)
srd(28, 10, 11, 1966080)
if STAMPS: A(f"v_mov_b32 v{VST}, 0")
stamp(0, VST)
A("s_lshl_b32 s46, s60, 1\ns_add_u32 s46, s46, s40\ns_lshl_b32 s46, s46, 5\ns_lshl_b32 s47, s61, 1\ns_add_u32 s46, s46, s47\ns_add_u32 s46, s46, s41")
A(f"s_lshl_b32 s46, s46, 7\ns_add_u32 s46, s46, {FLAG_OFF}\nv_and_b32 v{PF}, 31, v1\nv_lshlrev_b32 v{PF}, 2, v{PF}\nv_add_u32 v{PF}, s46, v{PF}")
A(f"s_lshl_b32 s46, s62, 12\ns_lshl_b32 s47, s41, 11\ns_add_u32 s46, s46, s47\ns_add_u32 s46, s46, {FLAG_OFF}")
A(f"v_and_b32 v{PP}, 15, v1\nv_lshlrev_b32 v{PP}, 7, v{PP}\nv_add_u32 v{PP}, s46, v{PP}")
A(f"v_lshlrev_b32 v{PL}, 4, v1")
A("s_lshl_b32 s46, s62, 2\ns_lshl_b32 s47, s40, 1\ns_add_u32 s46, s46, s47\ns_mul_i32 s46, s46, 48\ns_mul_i32 s47, s41, 24\ns_add_u32 s46, s46, s47\ns_lshl_b32 s46, s46, 10")
A(f"v_add_u32 v{PH}, s46, v{PL}\nv_add_u32 v{PH+1}, 49152, v{PH}")
A(f"v_lshrrev_b32 v{T}, 5, v1\nv_lshlrev_b32 v{T}, 4, v{T}\nv_bfe_u32 v{T+1}, v1, 4, 1\nv_lshlrev_b32 v{T+1}, 2, v{T+1}\nv_add_u32 v{T}, v{T}, v{T+1}")
A(f"v_bfe_u32 v{T+1}, v1, 2, 2\nv_add_u32 v{T}, v{T}, v{T+1}\nv_mul_u32_u24 v{T}, 160, v{T}\nv_and_b32 v{T+1}, 3, v1\nv_lshlrev_b32 v{T+1}, 3, v{T+1}\nv_add_u32 v{T}, v{T}, v{T+1}")
A(f"s_mul_i32 s46, s41, 20480\nv_add_u32 v{PT}, s46, v{T}\nv_add_u32 v{PT+1}, {2*STG}, v{PT}")
A(f"v_and_b32 v{PO}, 15, v1\ns_lshl_b32 s46, s62, 6\ns_lshl_b32 s47, s40, 5\ns_add_u32 s46, s46, s47\ns_lshl_b32 s47, s41, 4\ns_add_u32 s46, s46, s47\nv_add_u32 v{PO}, s46, v{PO}\nv_mul_u32_u24 v{PO}, 1280, v{PO}")
A(f"v_lshrrev_b32 v{T}, 4, v1\nv_lshlrev_b32 v{T}, 3, v{T}\nv_add_u32 v{PO}, v{PO}, v{T}\ns_mul_i32 s46, s63, 160\nv_add_u32 v{PO}, s46, v{PO}")
NE = args.cpf
if args.cpf == 3:
    A("s_mul_i32 s46, s67, 12\ns_mul_i32 s47, s38, 3\ns_add_u32 s46, s46, s47")
    A("s_mul_i32 s47, s67, 6\ns_add_u32 s47, s47, 96\ns_lshl_b32 s48, s38, 1\ns_add_u32 s47, s47, s48")
    A("s_cmp_lt_u32 s38, 3\ns_cselect_b32 s54, 2, 0\ns_cmp_lt_u32 s67, 16\ns_cselect_b32 s48, s46, s47\ns_cselect_b32 s54, 3, s54")
    A("s_cmp_lt_u32 s67, 32\ns_cselect_b32 s54, s54, 0\ns_cselect_b32 s48, s48, 0")
else:
    A("s_lshl_b32 s48, s67, 4\ns_lshl_b32 s47, s38, 2\ns_add_u32 s48, s48, s47\ns_cmp_lt_u32 s67, 32\ns_cselect_b32 s54, 4, 0\ns_cselect_b32 s48, s48, 0")
A("s_lshl_b32 s46, s48, 6\ns_mul_i32 s49, s59, 160\ns_mov_b32 s50, 52429")
for e in range(NE):
    A(f"v_add_u32 v{T}, s46, v1")
    if e: A(f"v_add_u32 v{T}, {64*e}, v{T}")
    A(f"v_mul_lo_u32 v{T+1}, v{T}, s50\nv_lshrrev_b32 v{T+1}, 19, v{T+1}")
    A(f"v_mul_u32_u24 v{T+2}, 10, v{T+1}\nv_sub_u32 v{T+2}, v{T}, v{T+2}\nv_lshlrev_b32 v{T+2}, 4, v{T+2}")
    A(f"v_lshrrev_b32 v{T+3}, 5, v{T+1}\nv_subrev_u32 v{T+4}, 24, v{T+3}\nv_cmp_gt_u32 vcc, 24, v{T+3}\nv_mov_b32 v{T+5}, 768\ns_nop 0")
    A(f"v_cndmask_b32 v{T+3}, v{T+4}, v{T+3}, vcc\nv_cndmask_b32 v{T+5}, v{T+5}, v13, vcc")
    A(f"v_and_b32 v{T+4}, 7, v{T+3}\nv_mul_u32_u24 v{T+4}, 96, v{T+4}\nv_add_u32 v{T+5}, v{T+5}, v{T+4}")
    A(f"v_lshrrev_b32 v{T+4}, 3, v{T+3}\nv_lshlrev_b32 v{T+4}, 4, v{T+4}\nv_add_u32 v{T+5}, v{T+5}, v{T+4}")
    A(f"v_bfe_u32 v{T+4}, v{T+1}, 4, 1\nv_mul_u32_u24 v{T+4}, 48, v{T+4}\nv_add_u32 v{T+5}, v{T+5}, v{T+4}")
    A(f"v_and_b32 v{T+4}, 15, v{T+1}\nv_add_u32 v{T+5}, v{T+5}, v{T+4}")
    A(f"v_mul_u32_u24 v{T+5}, 1280, v{T+5}\nv_add_u32 v{249+e}, v{T+5}, v{T+2}")
A(f"s_mul_i32 s50, s59, 240\ns_add_u32 s50, s50, s48\ns_lshl_b32 s50, s50, 10\ns_add_u32 s50, s50, {WDP_OFF}")

def xreg(s, mi): return FR + 40*(s & 1) + 4*mi
def wreg(s, t, u): return FR + 40*(s & 1) + 16 + 4*(2*t + u)
def reads(s):
    c, ks = s >> 1, s & 1
    st = c % 3
    hi = 1 if st >= 2 else 0
    so = (st & 1) * STG
    r = []
    def rw(t, u):
        for rr in range(2):
            d = wreg(s, t, u) + 2*rr
            r.append(f"ds_read_b64_tr_b16 v[{d}:{d+1}], v{VW+3*hi+t} offset:{so + 6144*ks + 768*rr + 12288*u}")
    def rx(mi):
        d = xreg(s, mi)
        r.append(f"ds_read_b128 v[{d}:{d+3}], v{VX+2*hi+ks} offset:{so + 2048*mi}")
    rw(0, 0); rx(0); rx(1); rx(2); rx(3); rw(0, 1); rw(1, 0); rw(1, 1); rw(2, 0); rw(2, 1)
    return r
def mfma(s, mi, t, u):
    a = ACC + 4*((mi*3 + t)*2 + u)
    wa, xa = wreg(s, t, u), xreg(s, mi)
    c = "0" if s == 0 else f"v[{a}:{a+3}]"
    return f"v_mfma_f32_16x16x32_bf16 v[{a}:{a+3}], v[{wa}:{wa+3}], v[{xa}:{xa+3}], {c}"
def mfmas(s):
    if args.snake == 1:
        return [mfma(s, (mi if u == 0 else 3 - mi), t, u) for t in range(3) for u in range(2) for mi in range(4)]
    if args.snake == 2:
        tus = [(t, u) for t in range(3) for u in range(2)]
        return [mfma(s, mi, *(tus[k] if mi % 2 == 0 else tus[5 - k])) for mi in range(4) for k in range(6)]
    return [mfma(s, mi, t, u) for t in range(3) for u in range(2) for mi in range(4)]
def copy_ops(s):
    if s == CPS[0]:
        for e in range(NE):
            A(f"s_cmp_le_u32 s54, {e}\ns_cbranch_scc1 L_nocp1")
            A(f"buffer_load_dwordx4 v[{224+4*e}:{227+4*e}], v{249+e}, s[28:31], s49 offen")
        A("L_nocp1:")
    if s == CPS[1]:
        A("s_waitcnt vmcnt(0)")
        for e in range(NE):
            A(f"s_cmp_le_u32 s54, {e}\ns_cbranch_scc1 L_nocp2")
            A(f"buffer_store_dwordx4 v[{224+4*e}:{227+4*e}], v{PL}, s[32:35], s50 offen offset:{1024*e} sc1")
        A("L_nocp2:")
A("s_barrier")
stamp(1, VST)
for r in reads(0):
    A(r)
for s in range(18):
    m = mfmas(s)
    nx = reads(s + 1)
    A("s_waitcnt lgkmcnt(0)")
    i0 = 0
    if s & 1:
        for x in m[:4]: A(x)
        if s == CPS[2]: A("s_waitcnt vmcnt(0)")
        if args.cbar and s in (13, 17): stamp(11 if s == 13 else 13, VST)
        A("s_barrier")
        if args.cbar and s in (13, 17): stamp(12 if s == 13 else 14, VST)
        if args.cpos < 0: copy_ops(s)
        if s == 17:
            A("s_load_dword s65, s[14:15], 0")
        i0 = 4
    k = 0
    for i in range(i0, 24):
        A(m[i])
        if k < 16:
            A(nx[k]); k += 1
        if i == args.cpos: copy_ops(s)
for r in reads(19):
    A(r)
units = [(t, mp) for t in range(3) for mp in range(2)]
def epi(k):
    t, mp = units[k]
    o = 224 + 4*k
    TT = T + 8*(k & 1)
    e = []
    ga = [ACC + 4*(((2*mp + (j >> 2))*3 + t)*2 + 0) + (j & 3) for j in range(8)]
    ua = [ACC + 4*(((2*mp + (j >> 2))*3 + t)*2 + 1) + (j & 3) for j in range(8)]
    for j in range(0, 8, 2): e.append(f"v_pk_mul_f32 v[{TT+j}:{TT+j+1}], v[{ga[j]}:{ga[j]+1}], s[82:83]")
    for j in range(8): e.append(f"v_exp_f32 v{TT+j}, v{TT+j}")
    for j in range(0, 8, 2): e.append(f"v_pk_add_f32 v[{TT+j}:{TT+j+1}], v[{TT+j}:{TT+j+1}], s[84:85]")
    for j in range(8): e.append(f"v_rcp_f32 v{TT+j}, v{TT+j}")
    for j in range(0, 8, 2): e.append(f"v_pk_mul_f32 v[{TT+j}:{TT+j+1}], v[{TT+j}:{TT+j+1}], v[{ua[j]}:{ua[j]+1}]")
    for j in range(4): e.append(f"v_cvt_pk_bf16_f32 v{o+j}, v{TT+2*j}, v{TT+2*j+1}")
    e.append("s_nop 1")
    e.append(f"v_permlane32_swap_b32 v{o}, v{o+2}")
    e.append(f"v_permlane32_swap_b32 v{o+1}, v{o+3}")
    e.append(f"buffer_store_dwordx4 v[{o}:{o+3}], v{VH}, s[32:35], s{76+2*t+mp} offen sc1")
    return e
A("s_waitcnt lgkmcnt(0)")
A("s_barrier")
stamp(2, VST)
mstream = [mfma(s, 2*mp + mm, t, u) for (t, mp) in units for s in (18, 19) for u in range(2) for mm in range(2)]
for x in mstream[:8]:
    A(x)
A("s_mov_b32 s66, 0\ns_cmp_lg_u32 s65, 0\ns_cbranch_scc1 L_havenonce")
A("L_nloop:")
A("buffer_load_dword v14, v13, s[72:75], 0 offen sc1\ns_waitcnt vmcnt(0)\nv_readfirstlane_b32 s65, v14\ns_add_u32 s66, s66, 1")
A(f"s_cmp_gt_u32 s66, {SPIN}\ns_cbranch_scc1 L_havenonce\ns_cmp_eq_u32 s65, 0\ns_cbranch_scc1 L_nloop")
A("L_havenonce:")
A("s_mov_b32 s86, 0\ns_mov_b32 s87, 0x20000\ns_mov_b32 s88, 0x40000")
A("v_mov_b32 v2, s65")
for x in mstream[8:16]:
    A(x)
rem = mstream[16:]
cv = []
def cwait(tag):
    last = max(i for i, t in enumerate(cv) if t == tag)
    return len(cv) - 1 - last
def flag(stage):
    A(f"s_waitcnt vmcnt({cwait(('st', 2*stage + 1))})")
    A(f"buffer_store_dword v2, v{PF}, s[32:35], s{86+stage} offen sc1"); cv.append(("fl", stage))
for k in range(6):
    e = epi(k)
    ms = rem[8*k:8*k+8]
    pos = [1, 4, 7, 10, 13, 16, 19, 22]
    for i, x in enumerate(e):
        if ms and i in pos:
            A(ms[pos.index(i)])
        A(x)
    cv.append(("st", k))
    if k == args.f0at: flag(0)
stamp(3, VST)
flag(1)
A("s_barrier")
WD = 16
HRL = [176, 184, 192, 200, 6][:args.nh]
NH = len(HRL)
ACC2 = 216
def wdreg(i, n): return WD + 20*(i % 8) + 4*n
def wd_reads(i):
    jj, s = i >> 2, i & 3
    sl = WSLOT[jj]
    va = PT + 1 if sl >= 2 else PT
    so = (sl & 1) * STG
    r = []
    for n in range(5):
        for rr in range(2):
            d = wdreg(i, n) + 2*rr
            r.append(f"ds_read_b64_tr_b16 v[{d}:{d+1}], v{va} offset:{so + 5120*s + 32*n + 1280*rr}")
    return r
for i in range(8):
    if (args.p0early == 2 and i == 0) or (args.p0early == 3 and i == 4):
        flag(2)
        A(POLL(86)); cv.append(("p", 0))
    for r in wd_reads(i): A(r)
if args.p0early < 2: flag(2)
stamp(4, VST)
if args.p0early == 1: A(POLL(86)); cv.append(("p", 0))
A("s_waitcnt lgkmcnt(0)")
A("s_barrier")
stamp(5, VST)
def check(stage):
    A("s_mov_b32 s66, 0")
    A(f"L_chk{stage}:")
    A(f"v_cmp_ne_u32 vcc, s65, v5\ns_add_u32 s66, s66, 1\ns_nop 0")
    A(f"s_cmp_eq_u64 vcc, 0\ns_cbranch_scc1 L_go{stage}\ns_cmp_gt_u32 s66, {SPIN}\ns_cbranch_scc1 L_go{stage}\ns_sleep {args.sleep}")
    A(POLL(86+stage) + f"\ns_waitcnt vmcnt(0)\ns_branch L_chk{stage}")
    A(f"L_go{stage}:")
if not args.p0early: A(POLL(86)); cv.append(("p", 0))
A("s_waitcnt vmcnt(0)")
check(0)
stamp(6, VST)
def hreg(i, mm): return HRL[i % NH] + 4*mm
def h_loads(i):
    jj, s = i >> 2, i & 3
    if s == 0: A(f"s_xor_b32 s58, s89, {jj}\ns_lshl_b32 s58, s58, 12")
    for mm in range(2):
        A(f"buffer_load_dwordx4 v[{hreg(i,mm)}:{hreg(i,mm)+3}], v{PH+mm}, s[32:35], s58 offen offset:{1024*s} sc1"); cv.append(("h", i))
def poll(stage):
    A(POLL(86+stage)); cv.append(("p", len(cv)))
    return cv[-1]
for i in range(NH):
    h_loads(i)
if args.p1at < 0: ptag = poll(1)
for i in range(24):
    if i == 4*NCERT - 2:
        A("s_barrier")
    lg = " lgkmcnt(10)" if 8 <= i < 23 else (" lgkmcnt(0)" if i == 23 else "")
    A(f"s_waitcnt vmcnt({cwait(('h', i))}){lg}")
    if i == 0: stamp(7, VST)
    if i == args.p1at: ptag = poll(1)
    if i == 23:
        A("s_barrier")
    rd = wd_reads(i + 2) if 8 <= i + 2 < 24 else []
    k = 0
    for n in range(5):
        for mm in range(2):
            a = ACC2 + 4*(5*mm + n)
            c = "0" if i == 0 else f"v[{a}:{a+3}]"
            A(f"v_mfma_f32_16x16x32_bf16 v[{a}:{a+3}], v[{wdreg(i,n)}:{wdreg(i,n)+3}], v[{hreg(i,mm)}:{hreg(i,mm)+3}], {c}")
            if k < len(rd):
                A(rd[k]); k += 1
    j = i + NH
    if j < 24:
        if j % 8 == 0:
            A(f"s_waitcnt vmcnt({cwait(ptag)})")
            check(j // 8)
        h_loads(j)
        if j == 16 - NH:
            ptag = poll(2)
stamp(8, VST)
A(f"s_mul_i32 s46, s38, 5120\nv_add_u32 v10, s46, v{PL}")
A(f"s_xor_b32 s47, s38, 2\ns_mul_i32 s47, s47, 5120\nv_add_u32 v11, s47, v{PL}")
A("s_nop 4")
A("s_cmp_eq_u32 s41, 0\ns_cbranch_scc0 L_kh1")
OF = (" " + args.outflag) if args.outflag else ""
for kh in range(2):
    if kh == 1: A("L_kh1:")
    snd = 1 - kh
    for n in range(5):
        a = ACC2 + 4*(5*snd + n)
        A(f"ds_write_b128 v11, v[{a}:{a+3}] offset:{1024*n}")
    A("s_waitcnt lgkmcnt(0)\ns_barrier")
    for n in range(5):
        A(f"ds_read_b128 v[{16+4*n}:{19+4*n}], v10 offset:{1024*n}")
    for n in range(5):
        a = ACC2 + 4*(5*kh + n)
        A(f"s_waitcnt lgkmcnt({4-n})")
        for r in range(4):
            A(f"v_add_f32 v{16+4*n+r}, v{16+4*n+r}, v{a+r}")
        A(f"v_cvt_pk_bf16_f32 v{40+2*n}, v{16+4*n}, v{17+4*n}\nv_cvt_pk_bf16_f32 v{41+2*n}, v{18+4*n}, v{19+4*n}")
        A(f"buffer_store_dwordx2 v[{40+2*n}:{41+2*n}], v{PO}, s[68:71], 0 offen offset:{32*n}{OF}")
    if kh == 0:
        A("s_branch L_fin")
A("L_fin:")
stamp(9, VST)
if STAMPS or PROBE:
    A("s_waitcnt vmcnt(0)")
stamp(10, VST)
if PROBE:
    A("s_memrealtime s[46:47]\ns_waitcnt lgkmcnt(0)\ns_sub_u32 s48, s94, s92\ns_min_u32 s48, s48, 10000\ns_add_u32 s48, s48, s46")
    A("L_pspin:\ns_memrealtime s[46:47]\ns_waitcnt lgkmcnt(0)\ns_sub_u32 s49, s48, s46\ns_cmp_gt_i32 s49, 0\ns_cbranch_scc1 L_pspin")
store_stamps(VST, 16, 0, "L_st0", 38, 0)
A("s_endpgm")

out.append('.section .rodata,"a"\n.p2align 6')
out.append(f""".amdhsa_kernel {KN}
  .amdhsa_next_free_vgpr 256
  .amdhsa_next_free_sgpr 100
  .amdhsa_accum_offset 256
  .amdhsa_group_segment_fixed_size 0
  .amdhsa_kernarg_size 56
  .amdhsa_user_sgpr_count 2
  .amdhsa_user_sgpr_kernarg_segment_ptr 1
  .amdhsa_system_sgpr_workgroup_id_x 1
.end_amdhsa_kernel""")
print("\n".join(out))
```

```python
import sys, argparse
ap = argparse.ArgumentParser()
ap.add_argument("--stamps", action="store_true")
ap.add_argument("--ser", type=int, default=0)
ap.add_argument("--thr", type=int, default=10)
ap.add_argument("--thr2", type=int, default=6)
ap.add_argument("--wdat", default="9:6,10:5")
ap.add_argument("--n11", type=int, default=40)
ap.add_argument("--chk", type=int, default=8)
ap.add_argument("--cps", default="4,6,9")
ap.add_argument("--sleep", type=int, default=4)
ap.add_argument("--f0at", type=int, default=4, help="F0 goes after this unit's store")
ap.add_argument("--nh", type=int, default=5)
ap.add_argument("--cpf", type=int, default=3, help="blocks per wave, fast WGs (3 -> medium WGs do the rest, 4 -> fast only (15 of 16))")
ap.add_argument("--outflag", default="")
ap.add_argument("--warm", type=int, default=0, help="producers pre-write their flag lines at start")
ap.add_argument("--pollmode", default="sc1")
ap.add_argument("--cbar", type=int, default=0, help="stamp C around barriers at steps 13,17 into 11..14")
ap.add_argument("--swp", type=int, default=0, help="pairwise chunk swap by parity in phase 2")
ap.add_argument("--lprio", type=int, default=0)
ap.add_argument("--cprio", type=int, default=0)
ap.add_argument("--cpos", type=int, default=16, help="mfma index inside the step after which copy ops are placed (-1: right after barrier)")
ap.add_argument("--snake", type=int, default=0)
ap.add_argument("--thr3", type=int, default=0, help="throttle for Wd ops after B12 (0: same as thr2)")
ap.add_argument("--probe", default="", help="i,j : C waves spin at the end for (t_j - t_i) [diagnostic]")
ap.add_argument("--p0early", type=int, default=0)
ap.add_argument("--p1at", type=int, default=0, help="step at whose start the stage-1 poll is issued (-1: with first loads)")
args = ap.parse_args()
STAMPS = args.stamps

out = []
def A(s):
    for l in s.split("\n"):
        out.append("    " + l if l and not l.endswith(":") and not l.startswith(".") and not l.startswith(";") else l)

HDR = open("standalone__glu_gated_glu__prompt.s.ref").read().split("\n")
for l in HDR[:8]:
    out.append(l)
KN = "standalone__glu_gated_glu__prompt_kernel"
out.append(f"; @launch grid=(256,1,1) block=(512,1,1) lds=163840")
A('.amdgcn_target "amdgcn-amd-amdhsa--gfx950"')
A(".text")

FLAG_OFF = 0x700000
WFLAG_OFF = 0x780000
WDP_OFF = 0x800000
STAMP_OFF = 192 << 20
STG = 40960
SPIN = 0x100000
CPS = [int(x) for x in args.cps.split(",")]

def srd(r, lo, hi, size):
    A(f"s_mov_b32 s{r}, s{lo}\ns_mov_b32 s{r+1}, s{hi}\ns_mov_b32 s{r+2}, {size}\ns_mov_b32 s{r+3}, 0x20000")

PROBE = [int(x) for x in args.probe.split(",")] if args.probe else []
def POLL(sreg):
    if args.pollmode == "atomic":
        return f"v_mov_b32 v5, s65\ns_mov_b64 exec, 0xffff\nv_mov_b32 v5, 0\nbuffer_atomic_or v5, v209, s[32:35], s{sreg} offen sc0 sc1\ns_mov_b64 exec, -1"
    return f"buffer_load_dword v5, v209, s[32:35], s{sreg} offen {args.pollmode}"
def stamp(i, vreg):
    if PROBE and vreg == 15 and i in PROBE:
        r = 92 + 2*PROBE.index(i)
        A(f"s_memrealtime s[{r}:{r+1}]\ns_waitcnt lgkmcnt(0)")
    if STAMPS:
        A(f"s_memrealtime s[90:91]\ns_waitcnt lgkmcnt(0)\nv_writelane_b32 v{vreg}, s90, {2*i}\nv_writelane_b32 v{vreg}, s91, {2*i+1}")

def store_stamps(vreg, vtmp, rec, label, wave_sreg, wavesel):
    if not STAMPS:
        return
    A(f"s_cmp_lg_u32 s{wave_sreg}, {wavesel}\ns_cbranch_scc1 {label}")
    A(f"s_lshl_b32 s90, s2, 7\ns_add_u32 s90, s90, {STAMP_OFF + rec*256*128}\nv_lshlrev_b32 v{vtmp}, 2, v1\nv_add_u32 v{vtmp}, s90, v{vtmp}")
    A(f"s_mov_b64 exec, 0xffffffff\nbuffer_store_dword v{vreg}, v{vtmp}, s[32:35], 0 offen")
    A(f"{label}:")

A(f".globl {KN}\n.p2align 8\n.type {KN},@function\n{KN}:")
A("s_load_dwordx8 s[4:11], s[0:1], 0")
A("s_load_dwordx4 s[12:15], s[0:1], 32")
A("s_load_dwordx2 s[36:37], s[0:1], 48")
A("s_cmp_ge_u32 s2, 256\ns_cbranch_scc1 L_end")
if PROBE and PROBE[0] == -1: A("s_memrealtime s[92:93]")
A("v_and_b32 v1, 63, v0\nv_lshrrev_b32 v2, 6, v0")
A("s_and_b32 s40, s2, 7\ns_lshr_b32 s41, s2, 3")
A("v_readfirstlane_b32 s38, v2")
A("s_and_b32 s60, s40, 1\ns_lshl_b32 s60, s60, 3\ns_and_b32 s42, s41, 7\ns_add_u32 s60, s60, s42")
A("s_lshr_b32 s61, s40, 1\ns_lshl_b32 s61, s61, 2\ns_lshr_b32 s43, s41, 3\ns_add_u32 s61, s61, s43")
A("s_lshl_b32 s64, s61, 1\ns_add_u32 s64, s64, s60\ns_and_b32 s64, s64, 7")
A("s_cmp_lt_u32 s38, 4\ns_cbranch_scc1 L_compute")

def common2():
    A("s_and_b32 s62, s40, 3\ns_lshl_b32 s62, s62, 3\ns_add_u32 s62, s62, s42")
    A("s_lshr_b32 s63, s40, 2\ns_lshl_b32 s63, s63, 2\ns_add_u32 s63, s63, s43")
    A("s_lshr_b32 s44, s64, 2\ns_lshl_b32 s45, s43, 1\ns_add_u32 s45, s45, s44")
    A("s_lshl_b32 s46, s45, 1\ns_and_b32 s47, s64, 1\ns_add_u32 s46, s46, s47\ns_add_u32 s45, s45, 16")
    A("s_bitcmp1_b32 s64, 1\ns_cselect_b32 s67, s45, s46")
    A("s_and_b32 s47, s64, 3\ns_cmp_eq_u32 s47, 3\ns_cselect_b32 s67, 255, s67")
    if args.cpf == 4:
        A("s_cmp_ge_u32 s67, 15\ns_cselect_b32 s67, 255, s67")
    if args.swp: A("s_add_u32 s89, s62, s63\ns_and_b32 s89, s89, 1")
    else: A("s_mov_b32 s89, 0")
NWF = 24 if args.cpf == 3 else 15

A("s_sub_u32 s39, s38, 4")
if args.lprio: A(f"s_setprio {args.lprio}")
A("v_lshrrev_b32 v10, 3, v1\nv_and_b32 v11, 7, v1\nv_lshrrev_b32 v12, 4, v1\nv_xor_b32 v13, v11, v12\nv_xor_b32 v14, 4, v13")
A("s_lshl_b32 s46, s60, 7\ns_lshl_b32 s47, s39, 5\ns_add_u32 s46, s46, s47\ns_mul_i32 s46, s46, 1280")
A("v_mul_u32_u24 v10, 1280, v10\nv_add_u32 v10, s46, v10\nv_lshlrev_b32 v13, 4, v13\nv_lshlrev_b32 v14, 4, v14")
A("v_add_u32 v2, v10, v13\nv_add_u32 v3, v10, v14")
A(f"v_add_u32 v4, {2*10240 - 2*1024}, v2\nv_add_u32 v5, {3*10240 - 3*1024}, v3\nv_add_u32 v3, {10240 - 1024}, v3")
A("s_mul_i32 s46, s61, 192\ns_mul_i32 s47, s39, 16*3072\ns_add_u32 s46, s46, s47")
for j in range(3):
    A(f"v_add_u32 v10, {64*j}, v1\nv_mul_u32_u24 v11, 171, v10\nv_lshrrev_b32 v11, 11, v11")
    A("v_mul_u32_u24 v12, 12, v11\nv_sub_u32 v12, v10, v12")
    A("v_mul_u32_u24 v13, 3072, v11\nv_add_u32 v13, s46, v13")
    if j: A(f"v_subrev_u32 v13, {1024*j}, v13")
    A(f"v_lshlrev_b32 v12, 4, v12\nv_and_b32 v14, 8, v11\nv_lshlrev_b32 v14, 2, v14\nv_xor_b32 v12, v12, v14\nv_add_u32 v{6+j}, v13, v12")
A("s_lshl_b32 s48, s39, 12")
A("s_mul_i32 s49, s39, 3072\ns_add_u32 s49, s49, 16384")
A("s_add_u32 s50, s49, 12288")
A("s_mul_i32 s55, s64, 10\ns_lshr_b32 s55, s55, 3")
A("s_waitcnt lgkmcnt(0)")
srd(16, 4, 5, 2621440)
srd(20, 6, 7, 1966080)
srd(24, 8, 9, 1966080)
ops = []
for c in range(10):
    st = (c % 3) * STG
    pre = f"s_add_u32 s56, s55, {c}\ns_sub_u32 s57, s56, 10\ns_cmp_ge_u32 s56, 10\ns_cselect_b32 s56, s57, s56\ns_lshl_b32 s51, s56, 7\ns_mul_i32 s52, s56, 64*3072\n"
    for j in range(4):
        p = (pre + f"s_add_u32 m0, s48, {st}") if j == 0 else ""
        ops.append((c, p, f"buffer_load_dwordx4 v{2+j}, s[16:19], s51 offen offset:{1024*j} lds"))
    for j in range(3):
        p = f"s_add_u32 m0, s49, {st}" if j == 0 else ""
        ops.append((c, p, f"buffer_load_dwordx4 v{6+j}, s[20:23], s52 offen offset:{1024*j} lds"))
    for j in range(3):
        p = f"s_add_u32 m0, s50, {st}" if j == 0 else ""
        ops.append((c, p, f"buffer_load_dwordx4 v{6+j}, s[24:27], s52 offen offset:{1024*j} lds"))
vm = []
def emit_op(op, thr):
    c, p, ins = op
    if p: A(p)
    if len(vm) >= thr:
        A(f"s_waitcnt vmcnt({thr-1})")
    elif p:
        A("s_nop 0")
    A(ins); vm.append(("c", c))
def wait_for(tag):
    last = max(i for i, t in enumerate(vm) if t == tag)
    A(f"s_waitcnt vmcnt({len(vm) - 1 - last})")
for op in ops[:args.thr]:
    emit_op(op, args.thr)
srd(32, 36, 37, 0x10000000)
srd(72, 14, 15, 256)
if STAMPS: A("v_mov_b32 v40, 0")
stamp(0, 40)
common2()
A("s_lshr_b32 s46, s39, 1\ns_mul_i32 s46, s46, 24\ns_and_b32 s47, s39, 1\ns_lshl_b32 s47, s47, 1\ns_add_u32 s46, s46, s47\ns_mul_i32 s47, s63, 48\ns_add_u32 s46, s46, s47\ns_mul_i32 s46, s46, 5120")
A(f"s_add_u32 s46, s46, {WDP_OFF}\nv_lshlrev_b32 v16, 4, v1\nv_add_u32 v16, s46, v16\nv_add_u32 v17, 4096, v16\nv_add_u32 v18, 8192, v16")
A("s_mul_i32 s53, s39, 10240")
A(f"v_min_u32 v19, {NWF-1}, v1\nv_lshlrev_b32 v19, 7, v19\ns_lshl_b32 s46, s63, 12\ns_add_u32 s46, s46, {WFLAG_OFF}\nv_add_u32 v19, s46, v19\nv_mov_b32 v20, 0\nv_mov_b32 v25, 0")
A(f"s_lshl_b32 s46, s40, 5\ns_add_u32 s46, s46, s67\ns_lshl_b32 s46, s46, 7\ns_add_u32 s46, s46, {WFLAG_OFF}")
A("v_and_b32 v27, 31, v1\nv_lshlrev_b32 v27, 2, v27\nv_add_u32 v27, s46, v27")
A("s_cmp_lt_u32 s67, 32\ns_cbranch_scc1 L_w1\nv_mov_b32 v27, -1\nL_w1:\ns_cmp_eq_u32 s39, 0\ns_cbranch_scc1 L_w0\nv_mov_b32 v19, -1\nv_mov_b32 v27, -1\nL_w0:")
if args.warm:
    A("buffer_store_dword v25, v27, s[32:35], 0 offen sc1"); vm.append(("g", -1))
WSLOT = [3, 1, 2, 0, 3, 1]
WFREE = [-1, 8, 9, 10, 12, 12]
wdn = [0]; checked = [False]; lastbar = [-1]
def issue_wd_ops(cnt):
    first = True
    for _ in range(cnt):
        g = wdn[0]; wdn[0] += 1
        jj, n = g // 10, g % 10
        assert lastbar[0] >= WFREE[jj], (jj, lastbar[0])
        assert checked[0]
        st = WSLOT[jj] * STG
        if n == 0:
            A(f"s_xor_b32 s58, s89, {jj}\ns_mul_i32 s58, s58, 20480")
        if n % 4 == 0 or first:
            A(f"s_add_u32 m0, s53, {st + 4096*(n//4)}")
        first = False
        A(f"s_waitcnt vmcnt({(args.thr3 if (args.thr3 and lastbar[0] >= 12) else args.thr2) - 1})")
        A(f"buffer_load_dwordx4 v{16 + n//4}, s[32:35], s58 offen offset:{1024*(n%4)} sc1 lds"); vm.append(("w", jj))
WDAT = dict((int(x.split(":")[0]), int(x.split(":")[1])) for x in args.wdat.split(",") if x)
oi = args.thr
def m0_restore():
    if oi < 100 and not ops[oi][1]:
        k = oi
        while not ops[k][1]: k -= 1
        A(ops[k][1].split("\n")[-1])
for c in range(10):
    tgt = min(100, 10*(c + 1) + args.thr)
    while oi < tgt:
        emit_op(ops[oi], args.thr); oi += 1
    if c in WDAT and c == 9:
        issue_wd_ops(WDAT[c])
    wait_for(("c", c))
    if c == args.chk - 1:
        A("buffer_load_dword v26, v19, s[32:35], 0 offen sc1"); vm.append(("f", 0))
    if c == args.chk:
        wait_for(("f", 0))
        A("s_cmp_lg_u32 s39, 0\ns_cbranch_scc1 L_wgo\ns_mov_b32 s66, 0")
        A("L_wchk:")
        A("v_cmp_ne_u32 vcc, s65, v26\ns_add_u32 s66, s66, 1\ns_nop 0")
        A(f"s_cmp_eq_u64 vcc, 0\ns_cbranch_scc1 L_wgo\ns_cmp_gt_u32 s66, {SPIN}\ns_cbranch_scc1 L_wgo\ns_sleep 2")
        A("buffer_load_dword v26, v19, s[32:35], 0 offen sc1\ns_waitcnt vmcnt(0)\ns_branch L_wchk")
        A("L_wgo:")
    if c in WDAT and c != 9:
        issue_wd_ops(WDAT[c]); m0_restore()
    A("s_barrier"); lastbar[0] = c
    if c == args.chk:
        checked[0] = True
    if c == 2:
        A("s_load_dword s65, s[14:15], 0")
    if c == (CPS[2] + 1) // 2:
        A("s_cmp_lg_u32 s39, 0\ns_cbranch_scc1 L_nowf")
        A("s_waitcnt lgkmcnt(0)\ns_mov_b32 s66, 0\ns_cmp_lg_u32 s65, 0\ns_cbranch_scc1 L_wf")
        A("L_wfl:")
        A("buffer_load_dword v25, v20, s[72:75], 0 offen sc1\ns_waitcnt vmcnt(0)\nv_readfirstlane_b32 s65, v25\ns_add_u32 s66, s66, 1")
        A(f"s_cmp_gt_u32 s66, {SPIN}\ns_cbranch_scc1 L_wf\ns_cmp_eq_u32 s65, 0\ns_cbranch_scc1 L_wfl")
        A("L_wf:")
        A("v_mov_b32 v25, s65")
        A("L_nowf:")
        A("buffer_store_dword v25, v27, s[32:35], 0 offen sc1"); vm.append(("g", 0))
    if args.ser: stamp(c + 1, 40)
    elif c in (0, 4, 9): stamp({0: 1, 4: 2, 9: 3}[c], 40)
def lstamp(i):
    if not args.ser: stamp(i, 40)
if 10 in WDAT: issue_wd_ops(WDAT[10])
A("s_barrier"); lastbar[0] = 10
lstamp(7)
issue_wd_ops(args.n11 - wdn[0])
wait_for(("w", 1))
lstamp(4)
A("s_barrier")
NCERT = args.n11 // 10
wait_for(("w", NCERT - 1))
A("s_barrier"); lastbar[0] = 12
lstamp(5)
issue_wd_ops(60 - wdn[0])
A("s_waitcnt vmcnt(0)")
lstamp(6)
A("s_barrier")
store_stamps(40, 41, 1, "L_st1", 39, 0)
A("L_end:")
A("s_endpgm")

A("L_compute:")
if args.cprio: A(f"s_setprio {args.cprio}")
common2()
A("s_mov_b32 s59, s40")
A("s_and_b32 s40, s38, 1\ns_lshr_b32 s41, s38, 1")
VX = 2; VW = 6; VH = 12; FR = 16; ACC = 96; T = 192; VST = 15
PF, PP, PH, PT, PL, PO = 208, 209, 210, 212, 214, 215
A(f"v_and_b32 v{T}, 15, v1")
A(f"s_lshl_b32 s42, s40, 6\nv_add_u32 v{T}, s42, v{T}\nv_lshlrev_b32 v{T}, 7, v{T}")
A(f"v_lshrrev_b32 v{T+1}, 4, v1\nv_bfe_u32 v{T+2}, v1, 1, 3\nv_xor_b32 v{T+1}, v{T+1}, v{T+2}")
for ks in range(2):
    A(f"v_xor_b32 v{T+2}, {4*ks}, v{T+1}\nv_lshlrev_b32 v{T+2}, 4, v{T+2}\nv_add_u32 v{VX+ks}, v{T}, v{T+2}\nv_add_u32 v{VX+2+ks}, {2*STG}, v{VX+ks}")
A(f"v_bfe_u32 v{T}, v1, 4, 1\nv_lshrrev_b32 v{T+1}, 4, v1\nv_bfe_u32 v{T+2}, v1, 2, 2\nv_and_b32 v{T+3}, 3, v1")
A(f"v_lshlrev_b32 v{T+1}, 3, v{T+1}\nv_add_u32 v{T+1}, v{T+1}, v{T+2}\nv_mul_u32_u24 v{T+1}, 192, v{T+1}")
A(f"v_lshlrev_b32 v{T+3}, 3, v{T+3}\nv_add_u32 v{T+1}, v{T+1}, v{T+3}\nv_add_u32 v{T+1}, 16384, v{T+1}")
A("s_mul_i32 s42, s41, 3")
for t in range(3):
    A(f"s_add_u32 s43, s42, {t}\nv_xor_b32 v{T+2}, s43, v{T}\nv_lshlrev_b32 v{T+2}, 5, v{T+2}\nv_add_u32 v{VW+t}, v{T+1}, v{T+2}\nv_add_u32 v{VW+3+t}, {2*STG}, v{VW+t}")
A(f"v_lshrrev_b32 v{T}, 5, v1\nv_mul_u32_u24 v{T}, 49152, v{T}\nv_and_b32 v{T+1}, 31, v1\nv_lshlrev_b32 v{T+1}, 4, v{T+1}\nv_add_u32 v{VH}, v{T}, v{T+1}")
A("s_lshl_b32 s44, s60, 3\ns_lshl_b32 s45, s40, 2\ns_add_u32 s44, s44, s45\ns_mul_i32 s44, s44, 49152")
A("s_lshr_b32 s45, s61, 3\ns_mul_i32 s45, s45, 24\ns_and_b32 s46, s61, 7\ns_add_u32 s45, s45, s46\ns_lshl_b32 s45, s45, 10\ns_add_u32 s44, s44, s45\ns_lshl_b32 s45, s41, 9\ns_add_u32 s44, s44, s45")
for t in range(3):
    for mp in range(2):
        A(f"s_add_u32 s{76+2*t+mp}, s44, {8192*t + 98304*mp}")
A("v_mov_b32 v13, 0")
A("s_mov_b32 s82, 0xbfb8aa3b\ns_mov_b32 s83, 0xbfb8aa3b\ns_mov_b32 s84, 1.0\ns_mov_b32 s85, 1.0")
A("s_waitcnt lgkmcnt(0)")
srd(72, 14, 15, 256)
A("s_or_b32 s46, s2, s38\ns_cmp_lg_u32 s46, 0\ns_cbranch_scc1 L_nononce")
A("s_memrealtime s[46:47]\ns_waitcnt lgkmcnt(0)\ns_lshl_b32 s46, s46, 3\ns_or_b32 s46, s46, 4\nv_mov_b32 v14, s46")
A("buffer_store_dword v14, v13, s[72:75], 0 offen sc1")
A("L_nononce:")
srd(32, 36, 37, 0x10000000)
srd(68, 12, 13, 2621440)
srd(28, 10, 11, 1966080)
if STAMPS: A(f"v_mov_b32 v{VST}, 0")
stamp(0, VST)
A("s_lshl_b32 s46, s60, 1\ns_add_u32 s46, s46, s40\ns_lshl_b32 s46, s46, 5\ns_lshl_b32 s47, s61, 1\ns_add_u32 s46, s46, s47\ns_add_u32 s46, s46, s41")
A(f"s_lshl_b32 s46, s46, 9\ns_add_u32 s46, s46, {FLAG_OFF}\nv_and_b32 v{PF}, 31, v1\nv_lshlrev_b32 v{PF}, 2, v{PF}\nv_add_u32 v{PF}, s46, v{PF}")
if args.warm:
    A(f"v_lshlrev_b32 v{T}, 3, v1\nv_add_u32 v{T}, s46, v{T}\nv_mov_b32 v{T+2}, 0\nv_mov_b32 v{T+3}, 0")
    A(f"buffer_store_dwordx2 v[{T+2}:{T+3}], v{T}, s[32:35], 0 offen sc1")
A(f"s_lshl_b32 s46, s62, 14\ns_lshl_b32 s47, s41, 13\ns_add_u32 s46, s46, s47\ns_add_u32 s46, s46, {FLAG_OFF}")
A(f"v_and_b32 v{PP}, 15, v1\nv_lshlrev_b32 v{PP}, 9, v{PP}\nv_add_u32 v{PP}, s46, v{PP}")
A(f"v_lshlrev_b32 v{PL}, 4, v1")
A("s_lshl_b32 s46, s62, 2\ns_lshl_b32 s47, s40, 1\ns_add_u32 s46, s46, s47\ns_mul_i32 s46, s46, 48\ns_mul_i32 s47, s41, 24\ns_add_u32 s46, s46, s47\ns_lshl_b32 s46, s46, 10")
A(f"v_add_u32 v{PH}, s46, v{PL}\nv_add_u32 v{PH+1}, 49152, v{PH}")
A(f"v_lshrrev_b32 v{T}, 5, v1\nv_lshlrev_b32 v{T}, 4, v{T}\nv_bfe_u32 v{T+1}, v1, 4, 1\nv_lshlrev_b32 v{T+1}, 2, v{T+1}\nv_add_u32 v{T}, v{T}, v{T+1}")
A(f"v_bfe_u32 v{T+1}, v1, 2, 2\nv_add_u32 v{T}, v{T}, v{T+1}\nv_mul_u32_u24 v{T}, 160, v{T}\nv_and_b32 v{T+1}, 3, v1\nv_lshlrev_b32 v{T+1}, 3, v{T+1}\nv_add_u32 v{T}, v{T}, v{T+1}")
A(f"s_mul_i32 s46, s41, 20480\nv_add_u32 v{PT}, s46, v{T}\nv_add_u32 v{PT+1}, {2*STG}, v{PT}")
A(f"v_and_b32 v{PO}, 15, v1\ns_lshl_b32 s46, s62, 6\ns_lshl_b32 s47, s40, 5\ns_add_u32 s46, s46, s47\ns_lshl_b32 s47, s41, 4\ns_add_u32 s46, s46, s47\nv_add_u32 v{PO}, s46, v{PO}\nv_mul_u32_u24 v{PO}, 1280, v{PO}")
A(f"v_lshrrev_b32 v{T}, 4, v1\nv_lshlrev_b32 v{T}, 3, v{T}\nv_add_u32 v{PO}, v{PO}, v{T}\ns_mul_i32 s46, s63, 160\nv_add_u32 v{PO}, s46, v{PO}")
NE = args.cpf
if args.cpf == 3:
    A("s_mul_i32 s46, s67, 12\ns_mul_i32 s47, s38, 3\ns_add_u32 s46, s46, s47")
    A("s_mul_i32 s47, s67, 6\ns_add_u32 s47, s47, 96\ns_lshl_b32 s48, s38, 1\ns_add_u32 s47, s47, s48")
    A("s_cmp_lt_u32 s38, 3\ns_cselect_b32 s54, 2, 0\ns_cmp_lt_u32 s67, 16\ns_cselect_b32 s48, s46, s47\ns_cselect_b32 s54, 3, s54")
    A("s_cmp_lt_u32 s67, 32\ns_cselect_b32 s54, s54, 0\ns_cselect_b32 s48, s48, 0")
else:
    A("s_lshl_b32 s48, s67, 4\ns_lshl_b32 s47, s38, 2\ns_add_u32 s48, s48, s47\ns_cmp_lt_u32 s67, 32\ns_cselect_b32 s54, 4, 0\ns_cselect_b32 s48, s48, 0")
A("s_lshl_b32 s46, s48, 6\ns_mul_i32 s49, s59, 160\ns_mov_b32 s50, 52429")
for e in range(NE):
    A(f"v_add_u32 v{T}, s46, v1")
    if e: A(f"v_add_u32 v{T}, {64*e}, v{T}")
    A(f"v_mul_lo_u32 v{T+1}, v{T}, s50\nv_lshrrev_b32 v{T+1}, 19, v{T+1}")
    A(f"v_mul_u32_u24 v{T+2}, 10, v{T+1}\nv_sub_u32 v{T+2}, v{T}, v{T+2}\nv_lshlrev_b32 v{T+2}, 4, v{T+2}")
    A(f"v_lshrrev_b32 v{T+3}, 5, v{T+1}\nv_subrev_u32 v{T+4}, 24, v{T+3}\nv_cmp_gt_u32 vcc, 24, v{T+3}\nv_mov_b32 v{T+5}, 768\ns_nop 0")
    A(f"v_cndmask_b32 v{T+3}, v{T+4}, v{T+3}, vcc\nv_cndmask_b32 v{T+5}, v{T+5}, v13, vcc")
    A(f"v_and_b32 v{T+4}, 7, v{T+3}\nv_mul_u32_u24 v{T+4}, 96, v{T+4}\nv_add_u32 v{T+5}, v{T+5}, v{T+4}")
    A(f"v_lshrrev_b32 v{T+4}, 3, v{T+3}\nv_lshlrev_b32 v{T+4}, 4, v{T+4}\nv_add_u32 v{T+5}, v{T+5}, v{T+4}")
    A(f"v_bfe_u32 v{T+4}, v{T+1}, 4, 1\nv_mul_u32_u24 v{T+4}, 48, v{T+4}\nv_add_u32 v{T+5}, v{T+5}, v{T+4}")
    A(f"v_and_b32 v{T+4}, 15, v{T+1}\nv_add_u32 v{T+5}, v{T+5}, v{T+4}")
    A(f"v_mul_u32_u24 v{T+5}, 1280, v{T+5}\nv_add_u32 v{249+e}, v{T+5}, v{T+2}")
A(f"s_mul_i32 s50, s59, 240\ns_add_u32 s50, s50, s48\ns_lshl_b32 s50, s50, 10\ns_add_u32 s50, s50, {WDP_OFF}")

def xreg(s, mi): return FR + 40*(s & 1) + 4*mi
def wreg(s, t, u): return FR + 40*(s & 1) + 16 + 4*(2*t + u)
def reads(s):
    c, ks = s >> 1, s & 1
    st = c % 3
    hi = 1 if st >= 2 else 0
    so = (st & 1) * STG
    r = []
    def rw(t, u):
        for rr in range(2):
            d = wreg(s, t, u) + 2*rr
            r.append(f"ds_read_b64_tr_b16 v[{d}:{d+1}], v{VW+3*hi+t} offset:{so + 6144*ks + 768*rr + 12288*u}")
    def rx(mi):
        d = xreg(s, mi)
        r.append(f"ds_read_b128 v[{d}:{d+3}], v{VX+2*hi+ks} offset:{so + 2048*mi}")
    rw(0, 0); rx(0); rx(1); rx(2); rx(3); rw(0, 1); rw(1, 0); rw(1, 1); rw(2, 0); rw(2, 1)
    return r
def mfma(s, mi, t, u):
    a = ACC + 4*((mi*3 + t)*2 + u)
    wa, xa = wreg(s, t, u), xreg(s, mi)
    c = "0" if s == 0 else f"v[{a}:{a+3}]"
    return f"v_mfma_f32_16x16x32_bf16 v[{a}:{a+3}], v[{wa}:{wa+3}], v[{xa}:{xa+3}], {c}"
def mfmas(s):
    if args.snake == 1:
        return [mfma(s, (mi if u == 0 else 3 - mi), t, u) for t in range(3) for u in range(2) for mi in range(4)]
    if args.snake == 2:
        tus = [(t, u) for t in range(3) for u in range(2)]
        return [mfma(s, mi, *(tus[k] if mi % 2 == 0 else tus[5 - k])) for mi in range(4) for k in range(6)]
    return [mfma(s, mi, t, u) for t in range(3) for u in range(2) for mi in range(4)]
def copy_ops(s):
    if s == CPS[0]:
        for e in range(NE):
            A(f"s_cmp_le_u32 s54, {e}\ns_cbranch_scc1 L_nocp1")
            A(f"buffer_load_dwordx4 v[{224+4*e}:{227+4*e}], v{249+e}, s[28:31], s49 offen")
        A("L_nocp1:")
    if s == CPS[1]:
        A("s_waitcnt vmcnt(0)")
        for e in range(NE):
            A(f"s_cmp_le_u32 s54, {e}\ns_cbranch_scc1 L_nocp2")
            A(f"buffer_store_dwordx4 v[{224+4*e}:{227+4*e}], v{PL}, s[32:35], s50 offen offset:{1024*e} sc1")
        A("L_nocp2:")
A("s_barrier")
stamp(1, VST)
for r in reads(0):
    A(r)
for s in range(18):
    m = mfmas(s)
    nx = reads(s + 1)
    A("s_waitcnt lgkmcnt(0)")
    i0 = 0
    if s & 1:
        for x in m[:4]: A(x)
        if s == CPS[2]: A("s_waitcnt vmcnt(0)")
        if args.cbar and s in (13, 17): stamp(11 if s == 13 else 13, VST)
        A("s_barrier")
        if args.cbar and s in (13, 17): stamp(12 if s == 13 else 14, VST)
        if args.cpos < 0: copy_ops(s)
        if s == 17:
            A("s_load_dword s65, s[14:15], 0")
        i0 = 4
    k = 0
    for i in range(i0, 24):
        A(m[i])
        if k < 16:
            A(nx[k]); k += 1
        if i == args.cpos: copy_ops(s)
for r in reads(19):
    A(r)
units = [(t, mp) for t in range(3) for mp in range(2)]
def epi(k):
    t, mp = units[k]
    o = 224 + 4*k
    TT = T + 8*(k & 1)
    e = []
    ga = [ACC + 4*(((2*mp + (j >> 2))*3 + t)*2 + 0) + (j & 3) for j in range(8)]
    ua = [ACC + 4*(((2*mp + (j >> 2))*3 + t)*2 + 1) + (j & 3) for j in range(8)]
    for j in range(0, 8, 2): e.append(f"v_pk_mul_f32 v[{TT+j}:{TT+j+1}], v[{ga[j]}:{ga[j]+1}], s[82:83]")
    for j in range(8): e.append(f"v_exp_f32 v{TT+j}, v{TT+j}")
    for j in range(0, 8, 2): e.append(f"v_pk_add_f32 v[{TT+j}:{TT+j+1}], v[{TT+j}:{TT+j+1}], s[84:85]")
    for j in range(8): e.append(f"v_rcp_f32 v{TT+j}, v{TT+j}")
    for j in range(0, 8, 2): e.append(f"v_pk_mul_f32 v[{TT+j}:{TT+j+1}], v[{TT+j}:{TT+j+1}], v[{ua[j]}:{ua[j]+1}]")
    for j in range(4): e.append(f"v_cvt_pk_bf16_f32 v{o+j}, v{TT+2*j}, v{TT+2*j+1}")
    e.append("s_nop 1")
    e.append(f"v_permlane32_swap_b32 v{o}, v{o+2}")
    e.append(f"v_permlane32_swap_b32 v{o+1}, v{o+3}")
    e.append(f"buffer_store_dwordx4 v[{o}:{o+3}], v{VH}, s[32:35], s{76+2*t+mp} offen sc1")
    return e
A("s_waitcnt lgkmcnt(0)")
A("s_barrier")
stamp(2, VST)
mstream = [mfma(s, 2*mp + mm, t, u) for (t, mp) in units for s in (18, 19) for u in range(2) for mm in range(2)]
for x in mstream[:8]:
    A(x)
A("s_mov_b32 s66, 0\ns_cmp_lg_u32 s65, 0\ns_cbranch_scc1 L_havenonce")
A("L_nloop:")
A("buffer_load_dword v14, v13, s[72:75], 0 offen sc1\ns_waitcnt vmcnt(0)\nv_readfirstlane_b32 s65, v14\ns_add_u32 s66, s66, 1")
A(f"s_cmp_gt_u32 s66, {SPIN}\ns_cbranch_scc1 L_havenonce\ns_cmp_eq_u32 s65, 0\ns_cbranch_scc1 L_nloop")
A("L_havenonce:")
A("s_mov_b32 s86, 0\ns_mov_b32 s87, 128\ns_mov_b32 s88, 256")
A("v_mov_b32 v2, s65")
for x in mstream[8:16]:
    A(x)
rem = mstream[16:]
cv = []
def cwait(tag):
    last = max(i for i, t in enumerate(cv) if t == tag)
    return len(cv) - 1 - last
def flag(stage):
    A(f"s_waitcnt vmcnt({cwait(('st', 2*stage + 1))})")
    A(f"buffer_store_dword v2, v{PF}, s[32:35], s{86+stage} offen sc1"); cv.append(("fl", stage))
for k in range(6):
    e = epi(k)
    ms = rem[8*k:8*k+8]
    pos = [1, 4, 7, 10, 13, 16, 19, 22]
    for i, x in enumerate(e):
        if ms and i in pos:
            A(ms[pos.index(i)])
        A(x)
    cv.append(("st", k))
    if k == args.f0at: flag(0)
stamp(3, VST)
flag(1)
A("s_barrier")
WD = 16
HRL = [176, 184, 192, 200, 6][:args.nh]
NH = len(HRL)
ACC2 = 216
def wdreg(i, n): return WD + 20*(i % 8) + 4*n
def wd_reads(i):
    jj, s = i >> 2, i & 3
    sl = WSLOT[jj]
    va = PT + 1 if sl >= 2 else PT
    so = (sl & 1) * STG
    r = []
    for n in range(5):
        for rr in range(2):
            d = wdreg(i, n) + 2*rr
            r.append(f"ds_read_b64_tr_b16 v[{d}:{d+1}], v{va} offset:{so + 5120*s + 32*n + 1280*rr}")
    return r
for i in range(8):
    if (args.p0early == 2 and i == 0) or (args.p0early == 3 and i == 4):
        flag(2)
        A(POLL(86)); cv.append(("p", 0))
    for r in wd_reads(i): A(r)
if args.p0early < 2: flag(2)
stamp(4, VST)
if args.p0early == 1: A(POLL(86)); cv.append(("p", 0))
A("s_waitcnt lgkmcnt(0)")
A("s_barrier")
stamp(5, VST)
def check(stage):
    A("s_mov_b32 s66, 0")
    A(f"L_chk{stage}:")
    A(f"v_cmp_ne_u32 vcc, s65, v5\ns_add_u32 s66, s66, 1\ns_nop 0")
    A(f"s_cmp_eq_u64 vcc, 0\ns_cbranch_scc1 L_go{stage}\ns_cmp_gt_u32 s66, {SPIN}\ns_cbranch_scc1 L_go{stage}\ns_sleep {args.sleep}")
    A(POLL(86+stage) + f"\ns_waitcnt vmcnt(0)\ns_branch L_chk{stage}")
    A(f"L_go{stage}:")
if not args.p0early: A(POLL(86)); cv.append(("p", 0))
A("s_waitcnt vmcnt(0)")
check(0)
stamp(6, VST)
def hreg(i, mm): return HRL[i % NH] + 4*mm
def h_loads(i):
    jj, s = i >> 2, i & 3
    if s == 0: A(f"s_xor_b32 s58, s89, {jj}\ns_lshl_b32 s58, s58, 12")
    for mm in range(2):
        A(f"buffer_load_dwordx4 v[{hreg(i,mm)}:{hreg(i,mm)+3}], v{PH+mm}, s[32:35], s58 offen offset:{1024*s} sc1"); cv.append(("h", i))
def poll(stage):
    A(POLL(86+stage)); cv.append(("p", len(cv)))
    return cv[-1]
for i in range(NH):
    h_loads(i)
if args.p1at < 0: ptag = poll(1)
for i in range(24):
    if i == 4*NCERT - 2:
        A("s_barrier")
    lg = " lgkmcnt(10)" if 8 <= i < 23 else (" lgkmcnt(0)" if i == 23 else "")
    A(f"s_waitcnt vmcnt({cwait(('h', i))}){lg}")
    if i == 0: stamp(7, VST)
    if i == args.p1at: ptag = poll(1)
    if i == 23:
        A("s_barrier")
    rd = wd_reads(i + 2) if 8 <= i + 2 < 24 else []
    k = 0
    for n in range(5):
        for mm in range(2):
            a = ACC2 + 4*(5*mm + n)
            c = "0" if i == 0 else f"v[{a}:{a+3}]"
            A(f"v_mfma_f32_16x16x32_bf16 v[{a}:{a+3}], v[{wdreg(i,n)}:{wdreg(i,n)+3}], v[{hreg(i,mm)}:{hreg(i,mm)+3}], {c}")
            if k < len(rd):
                A(rd[k]); k += 1
    j = i + NH
    if j < 24:
        if j % 8 == 0:
            A(f"s_waitcnt vmcnt({cwait(ptag)})")
            check(j // 8)
        h_loads(j)
        if j == 16 - NH:
            ptag = poll(2)
stamp(8, VST)
A(f"s_mul_i32 s46, s38, 5120\nv_add_u32 v10, s46, v{PL}")
A(f"s_xor_b32 s47, s38, 2\ns_mul_i32 s47, s47, 5120\nv_add_u32 v11, s47, v{PL}")
A("s_nop 4")
A("s_cmp_eq_u32 s41, 0\ns_cbranch_scc0 L_kh1")
OF = (" " + args.outflag) if args.outflag else ""
for kh in range(2):
    if kh == 1: A("L_kh1:")
    snd = 1 - kh
    for n in range(5):
        a = ACC2 + 4*(5*snd + n)
        A(f"ds_write_b128 v11, v[{a}:{a+3}] offset:{1024*n}")
    A("s_waitcnt lgkmcnt(0)\ns_barrier")
    for n in range(5):
        A(f"ds_read_b128 v[{16+4*n}:{19+4*n}], v10 offset:{1024*n}")
    for n in range(5):
        a = ACC2 + 4*(5*kh + n)
        A(f"s_waitcnt lgkmcnt({4-n})")
        for r in range(4):
            A(f"v_add_f32 v{16+4*n+r}, v{16+4*n+r}, v{a+r}")
        A(f"v_cvt_pk_bf16_f32 v{40+2*n}, v{16+4*n}, v{17+4*n}\nv_cvt_pk_bf16_f32 v{41+2*n}, v{18+4*n}, v{19+4*n}")
        A(f"buffer_store_dwordx2 v[{40+2*n}:{41+2*n}], v{PO}, s[68:71], 0 offen offset:{32*n}{OF}")
    if kh == 0:
        A("s_branch L_fin")
A("L_fin:")
stamp(9, VST)
if STAMPS or PROBE:
    A("s_waitcnt vmcnt(0)")
stamp(10, VST)
if PROBE:
    A("s_memrealtime s[46:47]\ns_waitcnt lgkmcnt(0)\ns_sub_u32 s48, s94, s92\ns_min_u32 s48, s48, 10000\ns_add_u32 s48, s48, s46")
    A("L_pspin:\ns_memrealtime s[46:47]\ns_waitcnt lgkmcnt(0)\ns_sub_u32 s49, s48, s46\ns_cmp_gt_i32 s49, 0\ns_cbranch_scc1 L_pspin")
store_stamps(VST, 16, 0, "L_st0", 38, 0)
A("s_endpgm")

out.append('.section .rodata,"a"\n.p2align 6')
out.append(f""".amdhsa_kernel {KN}
  .amdhsa_next_free_vgpr 256
  .amdhsa_next_free_sgpr 100
  .amdhsa_accum_offset 256
  .amdhsa_group_segment_fixed_size 0
  .amdhsa_kernarg_size 56
  .amdhsa_user_sgpr_count 2
  .amdhsa_user_sgpr_kernarg_segment_ptr 1
  .amdhsa_system_sgpr_workgroup_id_x 1
.end_amdhsa_kernel""")
print("\n".join(out))
```

```python
import sys, argparse
ap = argparse.ArgumentParser()
ap.add_argument("--stamps", action="store_true")
ap.add_argument("--ser", type=int, default=0)
ap.add_argument("--thr", type=int, default=10)
ap.add_argument("--thr2", type=int, default=6)
ap.add_argument("--wdat", default="9:6,10:5")
ap.add_argument("--n11", type=int, default=40)
ap.add_argument("--chk", type=int, default=8)
ap.add_argument("--cps", default="4,6,9")
ap.add_argument("--sleep", type=int, default=4)
ap.add_argument("--f0at", type=int, default=4, help="F0 goes after this unit's store")
ap.add_argument("--nh", type=int, default=5)
ap.add_argument("--cpf", type=int, default=3, help="blocks per wave, fast WGs (3 -> medium WGs do the rest, 4 -> fast only (15 of 16))")
ap.add_argument("--outflag", default="")
ap.add_argument("--touch", type=int, default=0, help="scalar TLB pre-touch stride in KB (test)")
ap.add_argument("--touchat", type=int, default=-1)
ap.add_argument("--warm", type=int, default=0, help="producers pre-write their flag lines at start")
ap.add_argument("--pollmode", default="sc1")
ap.add_argument("--cbar", type=int, default=0, help="stamp C around barriers at steps 13,17 into 11..14")
ap.add_argument("--swp", type=int, default=0, help="pairwise chunk swap by parity in phase 2")
ap.add_argument("--lprio", type=int, default=0)
ap.add_argument("--cprio", type=int, default=0)
ap.add_argument("--cpos", type=int, default=16, help="mfma index inside the step after which copy ops are placed (-1: right after barrier)")
ap.add_argument("--snake", type=int, default=0)
ap.add_argument("--thr3", type=int, default=0, help="throttle for Wd ops after B12 (0: same as thr2)")
ap.add_argument("--probe", default="", help="i,j : C waves spin at the end for (t_j - t_i) [diagnostic]")
ap.add_argument("--p0early", type=int, default=0)
ap.add_argument("--p1at", type=int, default=0, help="step at whose start the stage-1 poll is issued (-1: with first loads)")
args = ap.parse_args()
STAMPS = args.stamps

out = []
def A(s):
    for l in s.split("\n"):
        out.append("    " + l if l and not l.endswith(":") and not l.startswith(".") and not l.startswith(";") else l)

HDR = open("standalone__glu_gated_glu__prompt.s.ref").read().split("\n")
for l in HDR[:8]:
    out.append(l)
KN = "standalone__glu_gated_glu__prompt_kernel"
out.append(f"; @launch grid=(256,1,1) block=(512,1,1) lds=163840")
A('.amdgcn_target "amdgcn-amd-amdhsa--gfx950"')
A(".text")

FLAG_OFF = 0x700000
WFLAG_OFF = 0x780000
WDP_OFF = 0x800000
STAMP_OFF = 192 << 20
STG = 40960
SPIN = 0x100000
CPS = [int(x) for x in args.cps.split(",")]

def srd(r, lo, hi, size):
    A(f"s_mov_b32 s{r}, s{lo}\ns_mov_b32 s{r+1}, s{hi}\ns_mov_b32 s{r+2}, {size}\ns_mov_b32 s{r+3}, 0x20000")

PROBE = [int(x) for x in args.probe.split(",")] if args.probe else []
def POLL(sreg):
    if args.pollmode == "atomic":
        return f"v_mov_b32 v5, s65\ns_mov_b64 exec, 0xffff\nv_mov_b32 v5, 0\nbuffer_atomic_or v5, v209, s[32:35], s{sreg} offen sc0 sc1\ns_mov_b64 exec, -1"
    return f"buffer_load_dword v5, v209, s[32:35], s{sreg} offen {args.pollmode}"
def stamp(i, vreg):
    if PROBE and vreg == 15 and i in PROBE:
        r = 92 + 2*PROBE.index(i)
        A(f"s_memrealtime s[{r}:{r+1}]\ns_waitcnt lgkmcnt(0)")
    if STAMPS:
        A(f"s_memrealtime s[90:91]\ns_waitcnt lgkmcnt(0)\nv_writelane_b32 v{vreg}, s90, {2*i}\nv_writelane_b32 v{vreg}, s91, {2*i+1}")

def store_stamps(vreg, vtmp, rec, label, wave_sreg, wavesel):
    if not STAMPS:
        return
    A(f"s_cmp_lg_u32 s{wave_sreg}, {wavesel}\ns_cbranch_scc1 {label}")
    A(f"s_lshl_b32 s90, s2, 7\ns_add_u32 s90, s90, {STAMP_OFF + rec*256*128}\nv_lshlrev_b32 v{vtmp}, 2, v1\nv_add_u32 v{vtmp}, s90, v{vtmp}")
    A(f"s_mov_b64 exec, 0xffffffff\nbuffer_store_dword v{vreg}, v{vtmp}, s[32:35], 0 offen")
    A(f"{label}:")

A(f".globl {KN}\n.p2align 8\n.type {KN},@function\n{KN}:")
A("s_load_dwordx8 s[4:11], s[0:1], 0")
A("s_load_dwordx4 s[12:15], s[0:1], 32")
A("s_load_dwordx2 s[36:37], s[0:1], 48")
A("s_cmp_ge_u32 s2, 256\ns_cbranch_scc1 L_end")
if PROBE and PROBE[0] == -1: A("s_memrealtime s[92:93]")
A("v_and_b32 v1, 63, v0\nv_lshrrev_b32 v2, 6, v0")
A("s_and_b32 s40, s2, 7\ns_lshr_b32 s41, s2, 3")
A("v_readfirstlane_b32 s38, v2")
A("s_and_b32 s60, s40, 1\ns_lshl_b32 s60, s60, 3\ns_and_b32 s42, s41, 7\ns_add_u32 s60, s60, s42")
A("s_lshr_b32 s61, s40, 1\ns_lshl_b32 s61, s61, 2\ns_lshr_b32 s43, s41, 3\ns_add_u32 s61, s61, s43")
A("s_lshl_b32 s64, s61, 1\ns_add_u32 s64, s64, s60\ns_and_b32 s64, s64, 7")
A("s_cmp_lt_u32 s38, 4\ns_cbranch_scc1 L_compute")

def common2():
    A("s_and_b32 s62, s40, 3\ns_lshl_b32 s62, s62, 3\ns_add_u32 s62, s62, s42")
    A("s_lshr_b32 s63, s40, 2\ns_lshl_b32 s63, s63, 2\ns_add_u32 s63, s63, s43")
    A("s_lshr_b32 s44, s64, 2\ns_lshl_b32 s45, s43, 1\ns_add_u32 s45, s45, s44")
    A("s_lshl_b32 s46, s45, 1\ns_and_b32 s47, s64, 1\ns_add_u32 s46, s46, s47\ns_add_u32 s45, s45, 16")
    A("s_bitcmp1_b32 s64, 1\ns_cselect_b32 s67, s45, s46")
    A("s_and_b32 s47, s64, 3\ns_cmp_eq_u32 s47, 3\ns_cselect_b32 s67, 255, s67")
    if args.cpf == 4:
        A("s_cmp_ge_u32 s67, 15\ns_cselect_b32 s67, 255, s67")
    if args.swp: A("s_add_u32 s89, s62, s63\ns_and_b32 s89, s89, 1")
    else: A("s_mov_b32 s89, 0")
NWF = 24 if args.cpf == 3 else 15

A("s_sub_u32 s39, s38, 4")
if args.lprio: A(f"s_setprio {args.lprio}")
A("v_lshrrev_b32 v10, 3, v1\nv_and_b32 v11, 7, v1\nv_lshrrev_b32 v12, 4, v1\nv_xor_b32 v13, v11, v12\nv_xor_b32 v14, 4, v13")
A("s_lshl_b32 s46, s60, 7\ns_lshl_b32 s47, s39, 5\ns_add_u32 s46, s46, s47\ns_mul_i32 s46, s46, 1280")
A("v_mul_u32_u24 v10, 1280, v10\nv_add_u32 v10, s46, v10\nv_lshlrev_b32 v13, 4, v13\nv_lshlrev_b32 v14, 4, v14")
A("v_add_u32 v2, v10, v13\nv_add_u32 v3, v10, v14")
A(f"v_add_u32 v4, {2*10240 - 2*1024}, v2\nv_add_u32 v5, {3*10240 - 3*1024}, v3\nv_add_u32 v3, {10240 - 1024}, v3")
A("s_mul_i32 s46, s61, 192\ns_mul_i32 s47, s39, 16*3072\ns_add_u32 s46, s46, s47")
for j in range(3):
    A(f"v_add_u32 v10, {64*j}, v1\nv_mul_u32_u24 v11, 171, v10\nv_lshrrev_b32 v11, 11, v11")
    A("v_mul_u32_u24 v12, 12, v11\nv_sub_u32 v12, v10, v12")
    A("v_mul_u32_u24 v13, 3072, v11\nv_add_u32 v13, s46, v13")
    if j: A(f"v_subrev_u32 v13, {1024*j}, v13")
    A(f"v_lshlrev_b32 v12, 4, v12\nv_and_b32 v14, 8, v11\nv_lshlrev_b32 v14, 2, v14\nv_xor_b32 v12, v12, v14\nv_add_u32 v{6+j}, v13, v12")
A("s_lshl_b32 s48, s39, 12")
A("s_mul_i32 s49, s39, 3072\ns_add_u32 s49, s49, 16384")
A("s_add_u32 s50, s49, 12288")
A("s_mul_i32 s55, s64, 10\ns_lshr_b32 s55, s55, 3")
A("s_waitcnt lgkmcnt(0)")
srd(16, 4, 5, 2621440)
srd(20, 6, 7, 1966080)
srd(24, 8, 9, 1966080)
ops = []
for c in range(10):
    st = (c % 3) * STG
    pre = f"s_add_u32 s56, s55, {c}\ns_sub_u32 s57, s56, 10\ns_cmp_ge_u32 s56, 10\ns_cselect_b32 s56, s57, s56\ns_lshl_b32 s51, s56, 7\ns_mul_i32 s52, s56, 64*3072\n"
    for j in range(4):
        p = (pre + f"s_add_u32 m0, s48, {st}") if j == 0 else ""
        ops.append((c, p, f"buffer_load_dwordx4 v{2+j}, s[16:19], s51 offen offset:{1024*j} lds"))
    for j in range(3):
        p = f"s_add_u32 m0, s49, {st}" if j == 0 else ""
        ops.append((c, p, f"buffer_load_dwordx4 v{6+j}, s[20:23], s52 offen offset:{1024*j} lds"))
    for j in range(3):
        p = f"s_add_u32 m0, s50, {st}" if j == 0 else ""
        ops.append((c, p, f"buffer_load_dwordx4 v{6+j}, s[24:27], s52 offen offset:{1024*j} lds"))
vm = []
def emit_op(op, thr):
    c, p, ins = op
    if p: A(p)
    if len(vm) >= thr:
        A(f"s_waitcnt vmcnt({thr-1})")
    elif p:
        A("s_nop 0")
    A(ins); vm.append(("c", c))
def wait_for(tag):
    last = max(i for i, t in enumerate(vm) if t == tag)
    A(f"s_waitcnt vmcnt({len(vm) - 1 - last})")
for op in ops[:args.thr]:
    emit_op(op, args.thr)
srd(32, 36, 37, 0x10000000)
srd(72, 14, 15, 256)
if STAMPS: A("v_mov_b32 v40, 0")
stamp(0, 40)
common2()
A("s_lshr_b32 s46, s39, 1\ns_mul_i32 s46, s46, 24\ns_and_b32 s47, s39, 1\ns_lshl_b32 s47, s47, 1\ns_add_u32 s46, s46, s47\ns_mul_i32 s47, s63, 48\ns_add_u32 s46, s46, s47\ns_mul_i32 s46, s46, 5120")
A(f"s_add_u32 s46, s46, {WDP_OFF}\nv_lshlrev_b32 v16, 4, v1\nv_add_u32 v16, s46, v16\nv_add_u32 v17, 4096, v16\nv_add_u32 v18, 8192, v16")
A("s_mul_i32 s53, s39, 10240")
A(f"v_min_u32 v19, {NWF-1}, v1\nv_lshlrev_b32 v19, 7, v19\ns_lshl_b32 s46, s63, 12\ns_add_u32 s46, s46, {WFLAG_OFF}\nv_add_u32 v19, s46, v19\nv_mov_b32 v20, 0\nv_mov_b32 v25, 0")
A(f"s_lshl_b32 s46, s40, 5\ns_add_u32 s46, s46, s67\ns_lshl_b32 s46, s46, 7\ns_add_u32 s46, s46, {WFLAG_OFF}")
A("v_and_b32 v27, 31, v1\nv_lshlrev_b32 v27, 2, v27\nv_add_u32 v27, s46, v27")
A("s_cmp_lt_u32 s67, 32\ns_cbranch_scc1 L_w1\nv_mov_b32 v27, -1\nL_w1:\ns_cmp_eq_u32 s39, 0\ns_cbranch_scc1 L_w0\nv_mov_b32 v19, -1\nv_mov_b32 v27, -1\nL_w0:")
if args.warm:
    A("buffer_store_dword v25, v27, s[32:35], 0 offen sc1"); vm.append(("g", -1))
def touch():
    st = args.touch * 1024
    n_ws = (10 << 20) // st
    n_out = (2621440 + st - 1) // st
    tot = n_ws + n_out
    if tot <= 16:
        for k in range(n_ws):
            A(f"s_add_u32 s92, s36, {k*st + 4096}\ns_addc_u32 s93, s37, 0\ns_load_dword s94, s[92:93], 0")
        for k in range(n_out):
            A(f"s_add_u32 s92, s12, {k*st + 4096}\ns_addc_u32 s93, s13, 0\ns_load_dword s94, s[92:93], 0")
    else:
        A(f"s_lshr_b32 s95, s2, 3\ns_lshl_b32 s95, s95, 2\ns_add_u32 s95, s95, s39")
        for r in range((n_ws + 127) // 128):
            A(f"s_add_u32 s96, s95, {128*r}\ns_min_u32 s96, s96, {n_ws-1}\ns_mul_i32 s96, s96, {st}\ns_add_u32 s92, s36, s96\ns_addc_u32 s93, s37, 0\ns_load_dword s94, s[92:93], 0")
        A(f"s_min_u32 s96, s95, {n_out-1}\ns_mul_i32 s96, s96, {st}\ns_add_u32 s92, s12, s96\ns_addc_u32 s93, s13, 0\ns_load_dword s94, s[92:93], 0")
if args.touch and args.touchat < 0: touch()
WSLOT = [3, 1, 2, 0, 3, 1]
WFREE = [-1, 8, 9, 10, 12, 12]
wdn = [0]; checked = [False]; lastbar = [-1]
def issue_wd_ops(cnt):
    first = True
    for _ in range(cnt):
        g = wdn[0]; wdn[0] += 1
        jj, n = g // 10, g % 10
        assert lastbar[0] >= WFREE[jj], (jj, lastbar[0])
        assert checked[0]
        st = WSLOT[jj] * STG
        if n == 0:
            A(f"s_xor_b32 s58, s89, {jj}\ns_mul_i32 s58, s58, 20480")
        if n % 4 == 0 or first:
            A(f"s_add_u32 m0, s53, {st + 4096*(n//4)}")
        first = False
        A(f"s_waitcnt vmcnt({(args.thr3 if (args.thr3 and lastbar[0] >= 12) else args.thr2) - 1})")
        A(f"buffer_load_dwordx4 v{16 + n//4}, s[32:35], s58 offen offset:{1024*(n%4)} sc1 lds"); vm.append(("w", jj))
WDAT = dict((int(x.split(":")[0]), int(x.split(":")[1])) for x in args.wdat.split(",") if x)
oi = args.thr
def m0_restore():
    if oi < 100 and not ops[oi][1]:
        k = oi
        while not ops[k][1]: k -= 1
        A(ops[k][1].split("\n")[-1])
for c in range(10):
    tgt = min(100, 10*(c + 1) + args.thr)
    while oi < tgt:
        emit_op(ops[oi], args.thr); oi += 1
    if c in WDAT and c == 9:
        issue_wd_ops(WDAT[c])
    wait_for(("c", c))
    if c == args.chk - 1:
        A("buffer_load_dword v26, v19, s[32:35], 0 offen sc1"); vm.append(("f", 0))
    if c == args.chk:
        wait_for(("f", 0))
        A("s_cmp_lg_u32 s39, 0\ns_cbranch_scc1 L_wgo\ns_mov_b32 s66, 0")
        A("L_wchk:")
        A("v_cmp_ne_u32 vcc, s65, v26\ns_add_u32 s66, s66, 1\ns_nop 0")
        A(f"s_cmp_eq_u64 vcc, 0\ns_cbranch_scc1 L_wgo\ns_cmp_gt_u32 s66, {SPIN}\ns_cbranch_scc1 L_wgo\ns_sleep 2")
        A("buffer_load_dword v26, v19, s[32:35], 0 offen sc1\ns_waitcnt vmcnt(0)\ns_branch L_wchk")
        A("L_wgo:")
    if c in WDAT and c != 9:
        issue_wd_ops(WDAT[c]); m0_restore()
    A("s_barrier"); lastbar[0] = c
    if c == args.chk:
        checked[0] = True
    if args.touch and c == args.touchat: touch()
    if c == 2:
        A("s_load_dword s65, s[14:15], 0")
    if c == (CPS[2] + 1) // 2:
        A("s_cmp_lg_u32 s39, 0\ns_cbranch_scc1 L_nowf")
        A("s_waitcnt lgkmcnt(0)\ns_mov_b32 s66, 0\ns_cmp_lg_u32 s65, 0\ns_cbranch_scc1 L_wf")
        A("L_wfl:")
        A("buffer_load_dword v25, v20, s[72:75], 0 offen sc1\ns_waitcnt vmcnt(0)\nv_readfirstlane_b32 s65, v25\ns_add_u32 s66, s66, 1")
        A(f"s_cmp_gt_u32 s66, {SPIN}\ns_cbranch_scc1 L_wf\ns_cmp_eq_u32 s65, 0\ns_cbranch_scc1 L_wfl")
        A("L_wf:")
        A("v_mov_b32 v25, s65")
        A("L_nowf:")
        A("buffer_store_dword v25, v27, s[32:35], 0 offen sc1"); vm.append(("g", 0))
    if args.ser: stamp(c + 1, 40)
    elif c in (0, 4, 9): stamp({0: 1, 4: 2, 9: 3}[c], 40)
def lstamp(i):
    if not args.ser: stamp(i, 40)
if 10 in WDAT: issue_wd_ops(WDAT[10])
A("s_barrier"); lastbar[0] = 10
lstamp(7)
issue_wd_ops(args.n11 - wdn[0])
wait_for(("w", 1))
lstamp(4)
A("s_barrier")
NCERT = args.n11 // 10
wait_for(("w", NCERT - 1))
A("s_barrier"); lastbar[0] = 12
lstamp(5)
issue_wd_ops(60 - wdn[0])
A("s_waitcnt vmcnt(0)")
lstamp(6)
A("s_barrier")
store_stamps(40, 41, 1, "L_st1", 39, 0)
A("L_end:")
A("s_endpgm")

A("L_compute:")
if args.cprio: A(f"s_setprio {args.cprio}")
common2()
A("s_mov_b32 s59, s40")
A("s_and_b32 s40, s38, 1\ns_lshr_b32 s41, s38, 1")
VX = 2; VW = 6; VH = 12; FR = 16; ACC = 96; T = 192; VST = 15
PF, PP, PH, PT, PL, PO = 208, 209, 210, 212, 214, 215
A(f"v_and_b32 v{T}, 15, v1")
A(f"s_lshl_b32 s42, s40, 6\nv_add_u32 v{T}, s42, v{T}\nv_lshlrev_b32 v{T}, 7, v{T}")
A(f"v_lshrrev_b32 v{T+1}, 4, v1\nv_bfe_u32 v{T+2}, v1, 1, 3\nv_xor_b32 v{T+1}, v{T+1}, v{T+2}")
for ks in range(2):
    A(f"v_xor_b32 v{T+2}, {4*ks}, v{T+1}\nv_lshlrev_b32 v{T+2}, 4, v{T+2}\nv_add_u32 v{VX+ks}, v{T}, v{T+2}\nv_add_u32 v{VX+2+ks}, {2*STG}, v{VX+ks}")
A(f"v_bfe_u32 v{T}, v1, 4, 1\nv_lshrrev_b32 v{T+1}, 4, v1\nv_bfe_u32 v{T+2}, v1, 2, 2\nv_and_b32 v{T+3}, 3, v1")
A(f"v_lshlrev_b32 v{T+1}, 3, v{T+1}\nv_add_u32 v{T+1}, v{T+1}, v{T+2}\nv_mul_u32_u24 v{T+1}, 192, v{T+1}")
A(f"v_lshlrev_b32 v{T+3}, 3, v{T+3}\nv_add_u32 v{T+1}, v{T+1}, v{T+3}\nv_add_u32 v{T+1}, 16384, v{T+1}")
A("s_mul_i32 s42, s41, 3")
for t in range(3):
    A(f"s_add_u32 s43, s42, {t}\nv_xor_b32 v{T+2}, s43, v{T}\nv_lshlrev_b32 v{T+2}, 5, v{T+2}\nv_add_u32 v{VW+t}, v{T+1}, v{T+2}\nv_add_u32 v{VW+3+t}, {2*STG}, v{VW+t}")
A(f"v_lshrrev_b32 v{T}, 5, v1\nv_mul_u32_u24 v{T}, 49152, v{T}\nv_and_b32 v{T+1}, 31, v1\nv_lshlrev_b32 v{T+1}, 4, v{T+1}\nv_add_u32 v{VH}, v{T}, v{T+1}")
A("s_lshl_b32 s44, s60, 3\ns_lshl_b32 s45, s40, 2\ns_add_u32 s44, s44, s45\ns_mul_i32 s44, s44, 49152")
A("s_lshr_b32 s45, s61, 3\ns_mul_i32 s45, s45, 24\ns_and_b32 s46, s61, 7\ns_add_u32 s45, s45, s46\ns_lshl_b32 s45, s45, 10\ns_add_u32 s44, s44, s45\ns_lshl_b32 s45, s41, 9\ns_add_u32 s44, s44, s45")
for t in range(3):
    for mp in range(2):
        A(f"s_add_u32 s{76+2*t+mp}, s44, {8192*t + 98304*mp}")
A("v_mov_b32 v13, 0")
A("s_mov_b32 s82, 0xbfb8aa3b\ns_mov_b32 s83, 0xbfb8aa3b\ns_mov_b32 s84, 1.0\ns_mov_b32 s85, 1.0")
A("s_waitcnt lgkmcnt(0)")
srd(72, 14, 15, 256)
A("s_or_b32 s46, s2, s38\ns_cmp_lg_u32 s46, 0\ns_cbranch_scc1 L_nononce")
A("s_memrealtime s[46:47]\ns_waitcnt lgkmcnt(0)\ns_lshl_b32 s46, s46, 3\ns_or_b32 s46, s46, 4\nv_mov_b32 v14, s46")
A("buffer_store_dword v14, v13, s[72:75], 0 offen sc1")
A("L_nononce:")
srd(32, 36, 37, 0x10000000)
srd(68, 12, 13, 2621440)
srd(28, 10, 11, 1966080)
if STAMPS: A(f"v_mov_b32 v{VST}, 0")
stamp(0, VST)
A("s_lshl_b32 s46, s60, 1\ns_add_u32 s46, s46, s40\ns_lshl_b32 s46, s46, 5\ns_lshl_b32 s47, s61, 1\ns_add_u32 s46, s46, s47\ns_add_u32 s46, s46, s41")
A(f"s_lshl_b32 s46, s46, 9\ns_add_u32 s46, s46, {FLAG_OFF}\nv_and_b32 v{PF}, 31, v1\nv_lshlrev_b32 v{PF}, 2, v{PF}\nv_add_u32 v{PF}, s46, v{PF}")
if args.warm:
    A(f"v_lshlrev_b32 v{T}, 3, v1\nv_add_u32 v{T}, s46, v{T}\nv_mov_b32 v{T+2}, 0\nv_mov_b32 v{T+3}, 0")
    A(f"buffer_store_dwordx2 v[{T+2}:{T+3}], v{T}, s[32:35], 0 offen sc1")
A(f"s_lshl_b32 s46, s62, 14\ns_lshl_b32 s47, s41, 13\ns_add_u32 s46, s46, s47\ns_add_u32 s46, s46, {FLAG_OFF}")
A(f"v_and_b32 v{PP}, 15, v1\nv_lshlrev_b32 v{PP}, 9, v{PP}\nv_add_u32 v{PP}, s46, v{PP}")
A(f"v_lshlrev_b32 v{PL}, 4, v1")
A("s_lshl_b32 s46, s62, 2\ns_lshl_b32 s47, s40, 1\ns_add_u32 s46, s46, s47\ns_mul_i32 s46, s46, 48\ns_mul_i32 s47, s41, 24\ns_add_u32 s46, s46, s47\ns_lshl_b32 s46, s46, 10")
A(f"v_add_u32 v{PH}, s46, v{PL}\nv_add_u32 v{PH+1}, 49152, v{PH}")
A(f"v_lshrrev_b32 v{T}, 5, v1\nv_lshlrev_b32 v{T}, 4, v{T}\nv_bfe_u32 v{T+1}, v1, 4, 1\nv_lshlrev_b32 v{T+1}, 2, v{T+1}\nv_add_u32 v{T}, v{T}, v{T+1}")
A(f"v_bfe_u32 v{T+1}, v1, 2, 2\nv_add_u32 v{T}, v{T}, v{T+1}\nv_mul_u32_u24 v{T}, 160, v{T}\nv_and_b32 v{T+1}, 3, v1\nv_lshlrev_b32 v{T+1}, 3, v{T+1}\nv_add_u32 v{T}, v{T}, v{T+1}")
A(f"s_mul_i32 s46, s41, 20480\nv_add_u32 v{PT}, s46, v{T}\nv_add_u32 v{PT+1}, {2*STG}, v{PT}")
A(f"v_and_b32 v{PO}, 15, v1\ns_lshl_b32 s46, s62, 6\ns_lshl_b32 s47, s40, 5\ns_add_u32 s46, s46, s47\ns_lshl_b32 s47, s41, 4\ns_add_u32 s46, s46, s47\nv_add_u32 v{PO}, s46, v{PO}\nv_mul_u32_u24 v{PO}, 1280, v{PO}")
A(f"v_lshrrev_b32 v{T}, 4, v1\nv_lshlrev_b32 v{T}, 3, v{T}\nv_add_u32 v{PO}, v{PO}, v{T}\ns_mul_i32 s46, s63, 160\nv_add_u32 v{PO}, s46, v{PO}")
NE = args.cpf
if args.cpf == 3:
    A("s_mul_i32 s46, s67, 12\ns_mul_i32 s47, s38, 3\ns_add_u32 s46, s46, s47")
    A("s_mul_i32 s47, s67, 6\ns_add_u32 s47, s47, 96\ns_lshl_b32 s48, s38, 1\ns_add_u32 s47, s47, s48")
    A("s_cmp_lt_u32 s38, 3\ns_cselect_b32 s54, 2, 0\ns_cmp_lt_u32 s67, 16\ns_cselect_b32 s48, s46, s47\ns_cselect_b32 s54, 3, s54")
    A("s_cmp_lt_u32 s67, 32\ns_cselect_b32 s54, s54, 0\ns_cselect_b32 s48, s48, 0")
else:
    A("s_lshl_b32 s48, s67, 4\ns_lshl_b32 s47, s38, 2\ns_add_u32 s48, s48, s47\ns_cmp_lt_u32 s67, 32\ns_cselect_b32 s54, 4, 0\ns_cselect_b32 s48, s48, 0")
A("s_lshl_b32 s46, s48, 6\ns_mul_i32 s49, s59, 160\ns_mov_b32 s50, 52429")
for e in range(NE):
    A(f"v_add_u32 v{T}, s46, v1")
    if e: A(f"v_add_u32 v{T}, {64*e}, v{T}")
    A(f"v_mul_lo_u32 v{T+1}, v{T}, s50\nv_lshrrev_b32 v{T+1}, 19, v{T+1}")
    A(f"v_mul_u32_u24 v{T+2}, 10, v{T+1}\nv_sub_u32 v{T+2}, v{T}, v{T+2}\nv_lshlrev_b32 v{T+2}, 4, v{T+2}")
    A(f"v_lshrrev_b32 v{T+3}, 5, v{T+1}\nv_subrev_u32 v{T+4}, 24, v{T+3}\nv_cmp_gt_u32 vcc, 24, v{T+3}\nv_mov_b32 v{T+5}, 768\ns_nop 0")
    A(f"v_cndmask_b32 v{T+3}, v{T+4}, v{T+3}, vcc\nv_cndmask_b32 v{T+5}, v{T+5}, v13, vcc")
    A(f"v_and_b32 v{T+4}, 7, v{T+3}\nv_mul_u32_u24 v{T+4}, 96, v{T+4}\nv_add_u32 v{T+5}, v{T+5}, v{T+4}")
    A(f"v_lshrrev_b32 v{T+4}, 3, v{T+3}\nv_lshlrev_b32 v{T+4}, 4, v{T+4}\nv_add_u32 v{T+5}, v{T+5}, v{T+4}")
    A(f"v_bfe_u32 v{T+4}, v{T+1}, 4, 1\nv_mul_u32_u24 v{T+4}, 48, v{T+4}\nv_add_u32 v{T+5}, v{T+5}, v{T+4}")
    A(f"v_and_b32 v{T+4}, 15, v{T+1}\nv_add_u32 v{T+5}, v{T+5}, v{T+4}")
    A(f"v_mul_u32_u24 v{T+5}, 1280, v{T+5}\nv_add_u32 v{249+e}, v{T+5}, v{T+2}")
A(f"s_mul_i32 s50, s59, 240\ns_add_u32 s50, s50, s48\ns_lshl_b32 s50, s50, 10\ns_add_u32 s50, s50, {WDP_OFF}")

def xreg(s, mi): return FR + 40*(s & 1) + 4*mi
def wreg(s, t, u): return FR + 40*(s & 1) + 16 + 4*(2*t + u)
def reads(s):
    c, ks = s >> 1, s & 1
    st = c % 3
    hi = 1 if st >= 2 else 0
    so = (st & 1) * STG
    r = []
    def rw(t, u):
        for rr in range(2):
            d = wreg(s, t, u) + 2*rr
            r.append(f"ds_read_b64_tr_b16 v[{d}:{d+1}], v{VW+3*hi+t} offset:{so + 6144*ks + 768*rr + 12288*u}")
    def rx(mi):
        d = xreg(s, mi)
        r.append(f"ds_read_b128 v[{d}:{d+3}], v{VX+2*hi+ks} offset:{so + 2048*mi}")
    rw(0, 0); rx(0); rx(1); rx(2); rx(3); rw(0, 1); rw(1, 0); rw(1, 1); rw(2, 0); rw(2, 1)
    return r
def mfma(s, mi, t, u):
    a = ACC + 4*((mi*3 + t)*2 + u)
    wa, xa = wreg(s, t, u), xreg(s, mi)
    c = "0" if s == 0 else f"v[{a}:{a+3}]"
    return f"v_mfma_f32_16x16x32_bf16 v[{a}:{a+3}], v[{wa}:{wa+3}], v[{xa}:{xa+3}], {c}"
def mfmas(s):
    if args.snake == 1:
        return [mfma(s, (mi if u == 0 else 3 - mi), t, u) for t in range(3) for u in range(2) for mi in range(4)]
    if args.snake == 2:
        tus = [(t, u) for t in range(3) for u in range(2)]
        return [mfma(s, mi, *(tus[k] if mi % 2 == 0 else tus[5 - k])) for mi in range(4) for k in range(6)]
    return [mfma(s, mi, t, u) for t in range(3) for u in range(2) for mi in range(4)]
def copy_ops(s):
    if s == CPS[0]:
        for e in range(NE):
            A(f"s_cmp_le_u32 s54, {e}\ns_cbranch_scc1 L_nocp1")
            A(f"buffer_load_dwordx4 v[{224+4*e}:{227+4*e}], v{249+e}, s[28:31], s49 offen")
        A("L_nocp1:")
    if s == CPS[1]:
        A("s_waitcnt vmcnt(0)")
        for e in range(NE):
            A(f"s_cmp_le_u32 s54, {e}\ns_cbranch_scc1 L_nocp2")
            A(f"buffer_store_dwordx4 v[{224+4*e}:{227+4*e}], v{PL}, s[32:35], s50 offen offset:{1024*e} sc1")
        A("L_nocp2:")
A("s_barrier")
stamp(1, VST)
for r in reads(0):
    A(r)
for s in range(18):
    m = mfmas(s)
    nx = reads(s + 1)
    A("s_waitcnt lgkmcnt(0)")
    i0 = 0
    if s & 1:
        for x in m[:4]: A(x)
        if s == CPS[2]: A("s_waitcnt vmcnt(0)")
        if args.cbar and s in (13, 17): stamp(11 if s == 13 else 13, VST)
        A("s_barrier")
        if args.cbar and s in (13, 17): stamp(12 if s == 13 else 14, VST)
        if args.cpos < 0: copy_ops(s)
        if s == 17:
            A("s_load_dword s65, s[14:15], 0")
        i0 = 4
    k = 0
    for i in range(i0, 24):
        A(m[i])
        if k < 16:
            A(nx[k]); k += 1
        if i == args.cpos: copy_ops(s)
for r in reads(19):
    A(r)
units = [(t, mp) for t in range(3) for mp in range(2)]
def epi(k):
    t, mp = units[k]
    o = 224 + 4*k
    TT = T + 8*(k & 1)
    e = []
    ga = [ACC + 4*(((2*mp + (j >> 2))*3 + t)*2 + 0) + (j & 3) for j in range(8)]
    ua = [ACC + 4*(((2*mp + (j >> 2))*3 + t)*2 + 1) + (j & 3) for j in range(8)]
    for j in range(0, 8, 2): e.append(f"v_pk_mul_f32 v[{TT+j}:{TT+j+1}], v[{ga[j]}:{ga[j]+1}], s[82:83]")
    for j in range(8): e.append(f"v_exp_f32 v{TT+j}, v{TT+j}")
    for j in range(0, 8, 2): e.append(f"v_pk_add_f32 v[{TT+j}:{TT+j+1}], v[{TT+j}:{TT+j+1}], s[84:85]")
    for j in range(8): e.append(f"v_rcp_f32 v{TT+j}, v{TT+j}")
    for j in range(0, 8, 2): e.append(f"v_pk_mul_f32 v[{TT+j}:{TT+j+1}], v[{TT+j}:{TT+j+1}], v[{ua[j]}:{ua[j]+1}]")
    for j in range(4): e.append(f"v_cvt_pk_bf16_f32 v{o+j}, v{TT+2*j}, v{TT+2*j+1}")
    e.append("s_nop 1")
    e.append(f"v_permlane32_swap_b32 v{o}, v{o+2}")
    e.append(f"v_permlane32_swap_b32 v{o+1}, v{o+3}")
    e.append(f"buffer_store_dwordx4 v[{o}:{o+3}], v{VH}, s[32:35], s{76+2*t+mp} offen sc1")
    return e
A("s_waitcnt lgkmcnt(0)")
A("s_barrier")
stamp(2, VST)
mstream = [mfma(s, 2*mp + mm, t, u) for (t, mp) in units for s in (18, 19) for u in range(2) for mm in range(2)]
for x in mstream[:8]:
    A(x)
A("s_mov_b32 s66, 0\ns_cmp_lg_u32 s65, 0\ns_cbranch_scc1 L_havenonce")
A("L_nloop:")
A("buffer_load_dword v14, v13, s[72:75], 0 offen sc1\ns_waitcnt vmcnt(0)\nv_readfirstlane_b32 s65, v14\ns_add_u32 s66, s66, 1")
A(f"s_cmp_gt_u32 s66, {SPIN}\ns_cbranch_scc1 L_havenonce\ns_cmp_eq_u32 s65, 0\ns_cbranch_scc1 L_nloop")
A("L_havenonce:")
A("s_mov_b32 s86, 0\ns_mov_b32 s87, 128\ns_mov_b32 s88, 256")
A("v_mov_b32 v2, s65")
for x in mstream[8:16]:
    A(x)
rem = mstream[16:]
cv = []
def cwait(tag):
    last = max(i for i, t in enumerate(cv) if t == tag)
    return len(cv) - 1 - last
def flag(stage):
    A(f"s_waitcnt vmcnt({cwait(('st', 2*stage + 1))})")
    A(f"buffer_store_dword v2, v{PF}, s[32:35], s{86+stage} offen sc1"); cv.append(("fl", stage))
for k in range(6):
    e = epi(k)
    ms = rem[8*k:8*k+8]
    pos = [1, 4, 7, 10, 13, 16, 19, 22]
    for i, x in enumerate(e):
        if ms and i in pos:
            A(ms[pos.index(i)])
        A(x)
    cv.append(("st", k))
    if k == args.f0at: flag(0)
stamp(3, VST)
flag(1)
A("s_barrier")
WD = 16
HRL = [176, 184, 192, 200, 6][:args.nh]
NH = len(HRL)
ACC2 = 216
def wdreg(i, n): return WD + 20*(i % 8) + 4*n
def wd_reads(i):
    jj, s = i >> 2, i & 3
    sl = WSLOT[jj]
    va = PT + 1 if sl >= 2 else PT
    so = (sl & 1) * STG
    r = []
    for n in range(5):
        for rr in range(2):
            d = wdreg(i, n) + 2*rr
            r.append(f"ds_read_b64_tr_b16 v[{d}:{d+1}], v{va} offset:{so + 5120*s + 32*n + 1280*rr}")
    return r
for i in range(8):
    if (args.p0early == 2 and i == 0) or (args.p0early == 3 and i == 4):
        flag(2)
        A(POLL(86)); cv.append(("p", 0))
    for r in wd_reads(i): A(r)
if args.p0early < 2: flag(2)
stamp(4, VST)
if args.p0early == 1: A(POLL(86)); cv.append(("p", 0))
A("s_waitcnt lgkmcnt(0)")
A("s_barrier")
stamp(5, VST)
def check(stage):
    A("s_mov_b32 s66, 0")
    A(f"L_chk{stage}:")
    A(f"v_cmp_ne_u32 vcc, s65, v5\ns_add_u32 s66, s66, 1\ns_nop 0")
    A(f"s_cmp_eq_u64 vcc, 0\ns_cbranch_scc1 L_go{stage}\ns_cmp_gt_u32 s66, {SPIN}\ns_cbranch_scc1 L_go{stage}\ns_sleep {args.sleep}")
    A(POLL(86+stage) + f"\ns_waitcnt vmcnt(0)\ns_branch L_chk{stage}")
    A(f"L_go{stage}:")
if not args.p0early: A(POLL(86)); cv.append(("p", 0))
A("s_waitcnt vmcnt(0)")
check(0)
stamp(6, VST)
def hreg(i, mm): return HRL[i % NH] + 4*mm
def h_loads(i):
    jj, s = i >> 2, i & 3
    if s == 0: A(f"s_xor_b32 s58, s89, {jj}\ns_lshl_b32 s58, s58, 12")
    for mm in range(2):
        A(f"buffer_load_dwordx4 v[{hreg(i,mm)}:{hreg(i,mm)+3}], v{PH+mm}, s[32:35], s58 offen offset:{1024*s} sc1"); cv.append(("h", i))
def poll(stage):
    A(POLL(86+stage)); cv.append(("p", len(cv)))
    return cv[-1]
for i in range(NH):
    h_loads(i)
if args.p1at < 0: ptag = poll(1)
for i in range(24):
    if i == 4*NCERT - 2:
        A("s_barrier")
    lg = " lgkmcnt(10)" if 8 <= i < 23 else (" lgkmcnt(0)" if i == 23 else "")
    A(f"s_waitcnt vmcnt({cwait(('h', i))}){lg}")
    if i == 0: stamp(7, VST)
    if i == args.p1at: ptag = poll(1)
    if i == 23:
        A("s_barrier")
    rd = wd_reads(i + 2) if 8 <= i + 2 < 24 else []
    k = 0
    for n in range(5):
        for mm in range(2):
            a = ACC2 + 4*(5*mm + n)
            c = "0" if i == 0 else f"v[{a}:{a+3}]"
            A(f"v_mfma_f32_16x16x32_bf16 v[{a}:{a+3}], v[{wdreg(i,n)}:{wdreg(i,n)+3}], v[{hreg(i,mm)}:{hreg(i,mm)+3}], {c}")
            if k < len(rd):
                A(rd[k]); k += 1
    j = i + NH
    if j < 24:
        if j % 8 == 0:
            A(f"s_waitcnt vmcnt({cwait(ptag)})")
            check(j // 8)
        h_loads(j)
        if j == 16 - NH:
            ptag = poll(2)
stamp(8, VST)
A(f"s_mul_i32 s46, s38, 5120\nv_add_u32 v10, s46, v{PL}")
A(f"s_xor_b32 s47, s38, 2\ns_mul_i32 s47, s47, 5120\nv_add_u32 v11, s47, v{PL}")
A("s_nop 4")
A("s_cmp_eq_u32 s41, 0\ns_cbranch_scc0 L_kh1")
OF = (" " + args.outflag) if args.outflag else ""
for kh in range(2):
    if kh == 1: A("L_kh1:")
    snd = 1 - kh
    for n in range(5):
        a = ACC2 + 4*(5*snd + n)
        A(f"ds_write_b128 v11, v[{a}:{a+3}] offset:{1024*n}")
    A("s_waitcnt lgkmcnt(0)\ns_barrier")
    for n in range(5):
        A(f"ds_read_b128 v[{16+4*n}:{19+4*n}], v10 offset:{1024*n}")
    for n in range(5):
        a = ACC2 + 4*(5*kh + n)
        A(f"s_waitcnt lgkmcnt({4-n})")
        for r in range(4):
            A(f"v_add_f32 v{16+4*n+r}, v{16+4*n+r}, v{a+r}")
        A(f"v_cvt_pk_bf16_f32 v{40+2*n}, v{16+4*n}, v{17+4*n}\nv_cvt_pk_bf16_f32 v{41+2*n}, v{18+4*n}, v{19+4*n}")
        A(f"buffer_store_dwordx2 v[{40+2*n}:{41+2*n}], v{PO}, s[68:71], 0 offen offset:{32*n}{OF}")
    if kh == 0:
        A("s_branch L_fin")
A("L_fin:")
stamp(9, VST)
if STAMPS or PROBE:
    A("s_waitcnt vmcnt(0)")
stamp(10, VST)
if PROBE:
    A("s_memrealtime s[46:47]\ns_waitcnt lgkmcnt(0)\ns_sub_u32 s48, s94, s92\ns_min_u32 s48, s48, 10000\ns_add_u32 s48, s48, s46")
    A("L_pspin:\ns_memrealtime s[46:47]\ns_waitcnt lgkmcnt(0)\ns_sub_u32 s49, s48, s46\ns_cmp_gt_i32 s49, 0\ns_cbranch_scc1 L_pspin")
store_stamps(VST, 16, 0, "L_st0", 38, 0)
A("s_endpgm")

out.append('.section .rodata,"a"\n.p2align 6')
out.append(f""".amdhsa_kernel {KN}
  .amdhsa_next_free_vgpr 256
  .amdhsa_next_free_sgpr 100
  .amdhsa_accum_offset 256
  .amdhsa_group_segment_fixed_size 0
  .amdhsa_kernarg_size 56
  .amdhsa_user_sgpr_count 2
  .amdhsa_user_sgpr_kernarg_segment_ptr 1
  .amdhsa_system_sgpr_workgroup_id_x 1
.end_amdhsa_kernel""")
print("\n".join(out))
```

```python
import sys, argparse
ap = argparse.ArgumentParser()
ap.add_argument("--stamps", action="store_true")
ap.add_argument("--ser", type=int, default=0)
ap.add_argument("--thr", type=int, default=10)
ap.add_argument("--thr2", type=int, default=6)
ap.add_argument("--wdat", default="9:6,10:5")
ap.add_argument("--n11", type=int, default=40)
ap.add_argument("--chk", type=int, default=8)
ap.add_argument("--cps", default="4,6,9")
ap.add_argument("--sleep", type=int, default=4)
ap.add_argument("--f0at", type=int, default=4, help="F0 goes after this unit's store")
ap.add_argument("--nh", type=int, default=5)
ap.add_argument("--cpf", type=int, default=3, help="blocks per wave, fast WGs (3 -> medium WGs do the rest, 4 -> fast only (15 of 16))")
ap.add_argument("--outflag", default="")
ap.add_argument("--tail2", type=int, default=1)
ap.add_argument("--wide", type=int, default=1)
ap.add_argument("--pro2", type=int, default=1)
ap.add_argument("--cwarm", type=int, default=0, help="lines of code each WG pulls into L2 at start")
ap.add_argument("--wsoff", type=int, default=0, help="MB offset of the used ws window")
ap.add_argument("--touch", type=int, default=0, help="scalar TLB pre-touch stride in KB (test)")
ap.add_argument("--touchat", type=int, default=-1)
ap.add_argument("--warm", type=int, default=0, help="producers pre-write their flag lines at start")
ap.add_argument("--pollmode", default="sc1")
ap.add_argument("--cbar", type=int, default=0, help="stamp C around barriers at steps 13,17 into 11..14")
ap.add_argument("--swp", type=int, default=0, help="pairwise chunk swap by parity in phase 2")
ap.add_argument("--lprio", type=int, default=0)
ap.add_argument("--cprio", type=int, default=0)
ap.add_argument("--cpos", type=int, default=16, help="mfma index inside the step after which copy ops are placed (-1: right after barrier)")
ap.add_argument("--snake", type=int, default=0)
ap.add_argument("--thr3", type=int, default=0, help="throttle for Wd ops after B12 (0: same as thr2)")
ap.add_argument("--probe", default="", help="i,j : C waves spin at the end for (t_j - t_i) [diagnostic]")
ap.add_argument("--p0early", type=int, default=0)
ap.add_argument("--p1at", type=int, default=0, help="step at whose start the stage-1 poll is issued (-1: with first loads)")
args = ap.parse_args()
STAMPS = args.stamps

out = []
def A(s):
    for l in s.split("\n"):
        out.append("    " + l if l and not l.endswith(":") and not l.startswith(".") and not l.startswith(";") else l)

HDR = open("standalone__glu_gated_glu__prompt.s.ref").read().split("\n")
for l in HDR[:8]:
    out.append(l)
KN = "standalone__glu_gated_glu__prompt_kernel"
out.append(f"; @launch grid=(256,1,1) block=(512,1,1) lds=163840")
A('.amdgcn_target "amdgcn-amd-amdhsa--gfx950"')
A(".text")

FLAG_OFF = 0x700000
WFLAG_OFF = 0x780000
WDP_OFF = 0x800000
STAMP_OFF = 192 << 20
STG = 40960
SPIN = 0x100000
CPS = [int(x) for x in args.cps.split(",")]

def srd(r, lo, hi, size):
    if r == 32 and args.wsoff:
        A(f"s_add_u32 s32, s36, {args.wsoff << 20}\ns_addc_u32 s33, s37, 0\ns_mov_b32 s34, {0x10000000 - (args.wsoff << 20)}\ns_mov_b32 s35, 0x20000")
        return
    A(f"s_mov_b32 s{r}, s{lo}\ns_mov_b32 s{r+1}, s{hi}\ns_mov_b32 s{r+2}, {size}\ns_mov_b32 s{r+3}, 0x20000")

PROBE = [int(x) for x in args.probe.split(",")] if args.probe else []
def POLL(sreg):
    if args.pollmode == "atomic":
        return f"v_mov_b32 v5, s65\ns_mov_b64 exec, 0xffff\nv_mov_b32 v5, 0\nbuffer_atomic_or v5, v209, s[32:35], s{sreg} offen sc0 sc1\ns_mov_b64 exec, -1"
    return f"buffer_load_dword v5, v209, s[32:35], s{sreg} offen {args.pollmode}"
def stamp(i, vreg):
    if PROBE and vreg == 15 and i in PROBE:
        r = 92 + 2*PROBE.index(i)
        A(f"s_memrealtime s[{r}:{r+1}]\ns_waitcnt lgkmcnt(0)")
    if STAMPS:
        A(f"s_memrealtime s[90:91]\ns_waitcnt lgkmcnt(0)\nv_writelane_b32 v{vreg}, s90, {2*i}\nv_writelane_b32 v{vreg}, s91, {2*i+1}")

def store_stamps(vreg, vtmp, rec, label, wave_sreg, wavesel):
    if not STAMPS:
        return
    A(f"s_cmp_lg_u32 s{wave_sreg}, {wavesel}\ns_cbranch_scc1 {label}")
    A(f"s_lshl_b32 s90, s2, 7\ns_add_u32 s90, s90, {STAMP_OFF + rec*256*128}\nv_lshlrev_b32 v{vtmp}, 2, v1\nv_add_u32 v{vtmp}, s90, v{vtmp}")
    A(f"s_mov_b64 exec, 0xffffffff\nbuffer_store_dword v{vreg}, v{vtmp}, s[32:35], 0 offen")
    A(f"{label}:")

A(f".globl {KN}\n.p2align 8\n.type {KN},@function\n{KN}:")
if args.pro2:
    A("s_load_dwordx2 s[16:17], s[0:1], 0\ns_load_dwordx2 s[20:21], s[0:1], 8\ns_load_dwordx2 s[24:25], s[0:1], 16")
    A("s_load_dwordx2 s[10:11], s[0:1], 24")
else:
    A("s_load_dwordx8 s[4:11], s[0:1], 0")
A("s_load_dwordx4 s[12:15], s[0:1], 32")
A("s_load_dwordx2 s[36:37], s[0:1], 48")
A("s_cmp_ge_u32 s2, 256\ns_cbranch_scc1 L_end")
if PROBE and PROBE[0] == -1: A("s_memrealtime s[92:93]")
A("v_and_b32 v1, 63, v0\nv_lshrrev_b32 v2, 6, v0")
A("s_and_b32 s40, s2, 7\ns_lshr_b32 s41, s2, 3")
A("v_readfirstlane_b32 s38, v2")
A("s_and_b32 s60, s40, 1\ns_lshl_b32 s60, s60, 3\ns_and_b32 s42, s41, 7\ns_add_u32 s60, s60, s42")
A("s_lshr_b32 s61, s40, 1\ns_lshl_b32 s61, s61, 2\ns_lshr_b32 s43, s41, 3\ns_add_u32 s61, s61, s43")
A("s_lshl_b32 s64, s61, 1\ns_add_u32 s64, s64, s60\ns_and_b32 s64, s64, 7")
A("s_cmp_lt_u32 s38, 4\ns_cbranch_scc1 L_compute")

def common2():
    A("s_and_b32 s62, s40, 3\ns_lshl_b32 s62, s62, 3\ns_add_u32 s62, s62, s42")
    A("s_lshr_b32 s63, s40, 2\ns_lshl_b32 s63, s63, 2\ns_add_u32 s63, s63, s43")
    A("s_lshr_b32 s44, s64, 2\ns_lshl_b32 s45, s43, 1\ns_add_u32 s45, s45, s44")
    A("s_lshl_b32 s46, s45, 1\ns_and_b32 s47, s64, 1\ns_add_u32 s46, s46, s47\ns_add_u32 s45, s45, 16")
    A("s_bitcmp1_b32 s64, 1\ns_cselect_b32 s67, s45, s46")
    A("s_and_b32 s47, s64, 3\ns_cmp_eq_u32 s47, 3\ns_cselect_b32 s67, 255, s67")
    if args.cpf == 4:
        A("s_cmp_ge_u32 s67, 15\ns_cselect_b32 s67, 255, s67")
    if args.swp: A("s_add_u32 s89, s62, s63\ns_and_b32 s89, s89, 1")
    else: A("s_mov_b32 s89, 0")
NWF = 24 if args.cpf == 3 else 15

A("s_sub_u32 s39, s38, 4")
if args.lprio: A(f"s_setprio {args.lprio}")
A("v_lshrrev_b32 v10, 3, v1\nv_and_b32 v11, 7, v1\nv_lshrrev_b32 v12, 4, v1\nv_xor_b32 v13, v11, v12\nv_xor_b32 v14, 4, v13")
A("s_lshl_b32 s46, s60, 7\ns_lshl_b32 s47, s39, 5\ns_add_u32 s46, s46, s47\ns_mul_i32 s46, s46, 1280")
A("v_mul_u32_u24 v10, 1280, v10\nv_add_u32 v10, s46, v10\nv_lshlrev_b32 v13, 4, v13\nv_lshlrev_b32 v14, 4, v14")
A("v_add_u32 v2, v10, v13\nv_add_u32 v3, v10, v14")
A(f"v_add_u32 v4, {2*10240 - 2*1024}, v2\nv_add_u32 v5, {3*10240 - 3*1024}, v3\nv_add_u32 v3, {10240 - 1024}, v3")
A("s_mul_i32 s46, s61, 192\ns_mul_i32 s47, s39, 16*3072\ns_add_u32 s46, s46, s47")
for j in range(3):
    A(f"v_add_u32 v10, {64*j}, v1\nv_mul_u32_u24 v11, 171, v10\nv_lshrrev_b32 v11, 11, v11")
    A("v_mul_u32_u24 v12, 12, v11\nv_sub_u32 v12, v10, v12")
    A("v_mul_u32_u24 v13, 3072, v11\nv_add_u32 v13, s46, v13")
    if j: A(f"v_subrev_u32 v13, {1024*j}, v13")
    A(f"v_lshlrev_b32 v12, 4, v12\nv_and_b32 v14, 8, v11\nv_lshlrev_b32 v14, 2, v14\nv_xor_b32 v12, v12, v14\nv_add_u32 v{6+j}, v13, v12")
A("s_lshl_b32 s48, s39, 12")
A("s_mul_i32 s49, s39, 3072\ns_add_u32 s49, s49, 16384")
A("s_add_u32 s50, s49, 12288")
A("s_mul_i32 s55, s64, 10\ns_lshr_b32 s55, s55, 3")
if args.pro2:
    A("s_mov_b32 s18, 2621440\ns_mov_b32 s19, 0x20000\ns_mov_b32 s22, 1966080\ns_mov_b32 s23, 0x20000\ns_mov_b32 s26, 1966080\ns_mov_b32 s27, 0x20000")
else:
    A("s_waitcnt lgkmcnt(0)")
    srd(16, 4, 5, 2621440)
    srd(20, 6, 7, 1966080)
    srd(24, 8, 9, 1966080)
ops = []
for c in range(10):
    st = (c % 3) * STG
    pre = f"s_add_u32 s56, s55, {c}\ns_sub_u32 s57, s56, 10\ns_cmp_ge_u32 s56, 10\ns_cselect_b32 s56, s57, s56\ns_lshl_b32 s51, s56, 7\ns_mul_i32 s52, s56, 64*3072\n"
    for j in range(4):
        p = (pre + f"s_add_u32 m0, s48, {st}") if j == 0 else ""
        ops.append((c, p, f"buffer_load_dwordx4 v{2+j}, s[16:19], s51 offen offset:{1024*j} lds"))
    for j in range(3):
        p = f"s_add_u32 m0, s49, {st}" if j == 0 else ""
        ops.append((c, p, f"buffer_load_dwordx4 v{6+j}, s[20:23], s52 offen offset:{1024*j} lds"))
    for j in range(3):
        p = f"s_add_u32 m0, s50, {st}" if j == 0 else ""
        ops.append((c, p, f"buffer_load_dwordx4 v{6+j}, s[24:27], s52 offen offset:{1024*j} lds"))
vm = []
def emit_op(op, thr):
    c, p, ins = op
    if p: A(p)
    if len(vm) >= thr:
        A(f"s_waitcnt vmcnt({thr-1})")
    elif p:
        A("s_waitcnt lgkmcnt(0)" if (args.pro2 and not vm) else "s_nop 0")
    A(ins); vm.append(("c", c))
def wait_for(tag):
    last = max(i for i, t in enumerate(vm) if t == tag)
    A(f"s_waitcnt vmcnt({len(vm) - 1 - last})")
for op in ops[:args.thr]:
    emit_op(op, args.thr)
srd(32, 36, 37, 0x10000000)
srd(72, 14, 15, 256)
if STAMPS: A("v_mov_b32 v40, 0")
stamp(0, 40)
common2()
A("s_lshr_b32 s46, s39, 1\ns_mul_i32 s46, s46, 24\ns_and_b32 s47, s39, 1\ns_lshl_b32 s47, s47, 1\ns_add_u32 s46, s46, s47\ns_mul_i32 s47, s63, 48\ns_add_u32 s46, s46, s47\ns_mul_i32 s46, s46, 5120")
A(f"s_add_u32 s46, s46, {WDP_OFF}\nv_lshlrev_b32 v16, 4, v1\nv_add_u32 v16, s46, v16\nv_add_u32 v17, 4096, v16\nv_add_u32 v18, 8192, v16")
A("s_mul_i32 s53, s39, 10240")
A(f"v_min_u32 v19, {NWF-1}, v1\nv_lshlrev_b32 v19, 7, v19\ns_lshl_b32 s46, s63, 12\ns_add_u32 s46, s46, {WFLAG_OFF}\nv_add_u32 v19, s46, v19\nv_mov_b32 v20, 0\nv_mov_b32 v25, 0")
A(f"s_lshl_b32 s46, s40, 5\ns_add_u32 s46, s46, s67\ns_lshl_b32 s46, s46, 7\ns_add_u32 s46, s46, {WFLAG_OFF}")
A("v_and_b32 v27, 31, v1\nv_lshlrev_b32 v27, 2, v27\nv_add_u32 v27, s46, v27")
A("s_cmp_lt_u32 s67, 32\ns_cbranch_scc1 L_w1\nv_mov_b32 v27, -1\nL_w1:\ns_cmp_eq_u32 s39, 0\ns_cbranch_scc1 L_w0\nv_mov_b32 v19, -1\nv_mov_b32 v27, -1\nL_w0:")
if args.warm:
    A("buffer_store_dword v25, v27, s[32:35], 0 offen sc1"); vm.append(("g", -1))
def touch():
    st = args.touch * 1024
    n_ws = (10 << 20) // st
    n_out = (2621440 + st - 1) // st
    tot = n_ws + n_out
    if tot <= 16:
        for k in range(n_ws):
            A(f"s_add_u32 s92, s36, {k*st + 4096}\ns_addc_u32 s93, s37, 0\ns_load_dword s94, s[92:93], 0")
        for k in range(n_out):
            A(f"s_add_u32 s92, s12, {k*st + 4096}\ns_addc_u32 s93, s13, 0\ns_load_dword s94, s[92:93], 0")
    else:
        A(f"s_lshr_b32 s95, s2, 3\ns_lshl_b32 s95, s95, 2\ns_add_u32 s95, s95, s39")
        for r in range((n_ws + 127) // 128):
            A(f"s_add_u32 s96, s95, {128*r}\ns_min_u32 s96, s96, {n_ws-1}\ns_mul_i32 s96, s96, {st}\ns_add_u32 s92, s36, s96\ns_addc_u32 s93, s37, 0\ns_load_dword s94, s[92:93], 0")
        A(f"s_min_u32 s96, s95, {n_out-1}\ns_mul_i32 s96, s96, {st}\ns_add_u32 s92, s12, s96\ns_addc_u32 s93, s13, 0\ns_load_dword s94, s[92:93], 0")
if args.touch and args.touchat < 0: touch()
WSLOT = [3, 1, 2, 0, 3, 1]
WFREE = [-1, 8, 9, 10, 12, 12]
wdn = [0]; checked = [False]; lastbar = [-1]
def issue_wd_ops(cnt):
    first = True
    for _ in range(cnt):
        g = wdn[0]; wdn[0] += 1
        jj, n = g // 10, g % 10
        assert lastbar[0] >= WFREE[jj], (jj, lastbar[0])
        assert checked[0]
        st = WSLOT[jj] * STG
        if n == 0:
            A(f"s_xor_b32 s58, s89, {jj}\ns_mul_i32 s58, s58, 20480")
        if n % 4 == 0 or first:
            A(f"s_add_u32 m0, s53, {st + 4096*(n//4)}")
        first = False
        A(f"s_waitcnt vmcnt({(args.thr3 if (args.thr3 and lastbar[0] >= 12) else args.thr2) - 1})")
        A(f"buffer_load_dwordx4 v{16 + n//4}, s[32:35], s58 offen offset:{1024*(n%4)} sc1 lds"); vm.append(("w", jj))
WDAT = dict((int(x.split(":")[0]), int(x.split(":")[1])) for x in args.wdat.split(",") if x)
oi = args.thr
def m0_restore():
    if oi < 100 and not ops[oi][1]:
        k = oi
        while not ops[k][1]: k -= 1
        A(ops[k][1].split("\n")[-1])
for c in range(10):
    tgt = min(100, 10*(c + 1) + args.thr)
    while oi < tgt:
        emit_op(ops[oi], args.thr); oi += 1
    if c in WDAT and c == 9:
        issue_wd_ops(WDAT[c])
    wait_for(("c", c))
    if c == args.chk - 1:
        A("buffer_load_dword v26, v19, s[32:35], 0 offen sc1"); vm.append(("f", 0))
    if c == args.chk:
        wait_for(("f", 0))
        A("s_cmp_lg_u32 s39, 0\ns_cbranch_scc1 L_wgo\ns_mov_b32 s66, 0")
        A("L_wchk:")
        A("v_cmp_ne_u32 vcc, s65, v26\ns_add_u32 s66, s66, 1\ns_nop 0")
        A(f"s_cmp_eq_u64 vcc, 0\ns_cbranch_scc1 L_wgo\ns_cmp_gt_u32 s66, {SPIN}\ns_cbranch_scc1 L_wgo\ns_sleep 2")
        A("buffer_load_dword v26, v19, s[32:35], 0 offen sc1\ns_waitcnt vmcnt(0)\ns_branch L_wchk")
        A("L_wgo:")
    if c in WDAT and c != 9:
        issue_wd_ops(WDAT[c]); m0_restore()
    A("s_barrier"); lastbar[0] = c
    if c == args.chk:
        checked[0] = True
    if args.touch and c == args.touchat: touch()
    if c == 2:
        A("s_load_dword s65, s[14:15], 0")
    if c == (CPS[2] + 1) // 2:
        A("s_cmp_lg_u32 s39, 0\ns_cbranch_scc1 L_nowf")
        A("s_waitcnt lgkmcnt(0)\ns_mov_b32 s66, 0\ns_cmp_lg_u32 s65, 0\ns_cbranch_scc1 L_wf")
        A("L_wfl:")
        A("buffer_load_dword v25, v20, s[72:75], 0 offen sc1\ns_waitcnt vmcnt(0)\nv_readfirstlane_b32 s65, v25\ns_add_u32 s66, s66, 1")
        A(f"s_cmp_gt_u32 s66, {SPIN}\ns_cbranch_scc1 L_wf\ns_cmp_eq_u32 s65, 0\ns_cbranch_scc1 L_wfl")
        A("L_wf:")
        A("v_mov_b32 v25, s65")
        A("L_nowf:")
        A("buffer_store_dword v25, v27, s[32:35], 0 offen sc1"); vm.append(("g", 0))
    if args.ser: stamp(c + 1, 40)
    elif c in (0, 4, 9): stamp({0: 1, 4: 2, 9: 3}[c], 40)
def lstamp(i):
    if not args.ser: stamp(i, 40)
if 10 in WDAT: issue_wd_ops(WDAT[10])
A("s_barrier"); lastbar[0] = 10
lstamp(7)
issue_wd_ops(args.n11 - wdn[0])
wait_for(("w", 1))
lstamp(4)
A("s_barrier")
NCERT = args.n11 // 10
wait_for(("w", NCERT - 1))
A("s_barrier"); lastbar[0] = 12
lstamp(5)
issue_wd_ops(60 - wdn[0])
A("s_waitcnt vmcnt(0)")
lstamp(6)
A("s_barrier")
store_stamps(40, 41, 1, "L_st1", 39, 0)
A("L_end:")
A("s_endpgm")

A("L_compute:")
if args.cprio: A(f"s_setprio {args.cprio}")
common2()
if args.cwarm:
    A("s_cmp_lg_u32 s38, 1\ns_cbranch_scc1 L_nocw")
    A("s_getpc_b64 s[92:93]\nL_pc:\ns_sub_u32 s92, s92, L_pc-" + KN + "\ns_subb_u32 s93, s93, 0")
    A(f"s_mul_i32 s94, s41, {args.cwarm}\nv_min_u32 v192, {args.cwarm-1}, v1\nv_add_u32 v192, s94, v192\nv_lshlrev_b32 v192, 7, v192\nv_min_u32 v192, L_codeend-{KN}-4, v192")
    A("global_load_dword v254, v192, s[92:93]")
    A("L_nocw:")
A("s_mov_b32 s59, s40")
A("s_and_b32 s40, s38, 1\ns_lshr_b32 s41, s38, 1")
VX = 2; VW = 6; VH = 12; FR = 16; ACC = 96; T = 192; VST = 15
PF, PP, PH, PT, PL, PO = 208, 209, 210, 212, 214, 215
A(f"v_and_b32 v{T}, 15, v1")
A(f"s_lshl_b32 s42, s40, 6\nv_add_u32 v{T}, s42, v{T}\nv_lshlrev_b32 v{T}, 7, v{T}")
A(f"v_lshrrev_b32 v{T+1}, 4, v1\nv_bfe_u32 v{T+2}, v1, 1, 3\nv_xor_b32 v{T+1}, v{T+1}, v{T+2}")
for ks in range(2):
    A(f"v_xor_b32 v{T+2}, {4*ks}, v{T+1}\nv_lshlrev_b32 v{T+2}, 4, v{T+2}\nv_add_u32 v{VX+ks}, v{T}, v{T+2}\nv_add_u32 v{VX+2+ks}, {2*STG}, v{VX+ks}")
A(f"v_bfe_u32 v{T}, v1, 4, 1\nv_lshrrev_b32 v{T+1}, 4, v1\nv_bfe_u32 v{T+2}, v1, 2, 2\nv_and_b32 v{T+3}, 3, v1")
A(f"v_lshlrev_b32 v{T+1}, 3, v{T+1}\nv_add_u32 v{T+1}, v{T+1}, v{T+2}\nv_mul_u32_u24 v{T+1}, 192, v{T+1}")
A(f"v_lshlrev_b32 v{T+3}, 3, v{T+3}\nv_add_u32 v{T+1}, v{T+1}, v{T+3}\nv_add_u32 v{T+1}, 16384, v{T+1}")
A("s_mul_i32 s42, s41, 3")
for t in range(3):
    A(f"s_add_u32 s43, s42, {t}\nv_xor_b32 v{T+2}, s43, v{T}\nv_lshlrev_b32 v{T+2}, 5, v{T+2}\nv_add_u32 v{VW+t}, v{T+1}, v{T+2}\nv_add_u32 v{VW+3+t}, {2*STG}, v{VW+t}")
A(f"v_lshrrev_b32 v{T}, 5, v1\nv_mul_u32_u24 v{T}, 49152, v{T}\nv_and_b32 v{T+1}, 31, v1\nv_lshlrev_b32 v{T+1}, 4, v{T+1}\nv_add_u32 v{VH}, v{T}, v{T+1}")
A("s_lshl_b32 s44, s60, 3\ns_lshl_b32 s45, s40, 2\ns_add_u32 s44, s44, s45\ns_mul_i32 s44, s44, 49152")
A("s_lshr_b32 s45, s61, 3\ns_mul_i32 s45, s45, 24\ns_and_b32 s46, s61, 7\ns_add_u32 s45, s45, s46\ns_lshl_b32 s45, s45, 10\ns_add_u32 s44, s44, s45\ns_lshl_b32 s45, s41, 9\ns_add_u32 s44, s44, s45")
for t in range(3):
    for mp in range(2):
        A(f"s_add_u32 s{76+2*t+mp}, s44, {8192*t + 98304*mp}")
A("v_mov_b32 v13, 0")
A("s_mov_b32 s82, 0xbfb8aa3b\ns_mov_b32 s83, 0xbfb8aa3b\ns_mov_b32 s84, 1.0\ns_mov_b32 s85, 1.0")
A("s_waitcnt lgkmcnt(0)")
srd(72, 14, 15, 256)
A("s_or_b32 s46, s2, s38\ns_cmp_lg_u32 s46, 0\ns_cbranch_scc1 L_nononce")
A("s_memrealtime s[46:47]\ns_waitcnt lgkmcnt(0)\ns_lshl_b32 s46, s46, 3\ns_or_b32 s46, s46, 4\nv_mov_b32 v14, s46")
A("buffer_store_dword v14, v13, s[72:75], 0 offen sc1")
A("L_nononce:")
srd(32, 36, 37, 0x10000000)
srd(68, 12, 13, 2621440)
srd(28, 10, 11, 1966080)
if STAMPS: A(f"v_mov_b32 v{VST}, 0")
stamp(0, VST)
A("s_lshl_b32 s46, s60, 1\ns_add_u32 s46, s46, s40\ns_lshl_b32 s46, s46, 5\ns_lshl_b32 s47, s61, 1\ns_add_u32 s46, s46, s47\ns_add_u32 s46, s46, s41")
A(f"s_lshl_b32 s46, s46, 9\ns_add_u32 s46, s46, {FLAG_OFF}\nv_and_b32 v{PF}, 31, v1\nv_lshlrev_b32 v{PF}, 2, v{PF}\nv_add_u32 v{PF}, s46, v{PF}")
if args.warm:
    A(f"v_lshlrev_b32 v{T}, 3, v1\nv_add_u32 v{T}, s46, v{T}\nv_mov_b32 v{T+2}, 0\nv_mov_b32 v{T+3}, 0")
    A(f"buffer_store_dwordx2 v[{T+2}:{T+3}], v{T}, s[32:35], 0 offen sc1")
A(f"s_lshl_b32 s46, s62, 14\ns_lshl_b32 s47, s41, 13\ns_add_u32 s46, s46, s47\ns_add_u32 s46, s46, {FLAG_OFF}")
A(f"v_and_b32 v{PP}, 15, v1\nv_lshlrev_b32 v{PP}, 9, v{PP}\nv_add_u32 v{PP}, s46, v{PP}")
A(f"v_lshlrev_b32 v{PL}, 4, v1")
A("s_lshl_b32 s46, s62, 2\ns_lshl_b32 s47, s40, 1\ns_add_u32 s46, s46, s47\ns_mul_i32 s46, s46, 48\ns_mul_i32 s47, s41, 24\ns_add_u32 s46, s46, s47\ns_lshl_b32 s46, s46, 10")
if args.tail2:
    A(f"s_mul_i32 s47, s41, 49152\ns_add_u32 s47, s47, s46\nv_add_u32 v{PH+1}, s47, v{PL}\ns_xor_b32 s47, s41, 1\ns_mul_i32 s47, s47, 49152\ns_add_u32 s47, s47, s46\nv_add_u32 v{PH}, s47, v{PL}")
else:
    A(f"v_add_u32 v{PH}, s46, v{PL}\nv_add_u32 v{PH+1}, 49152, v{PH}")
A(f"v_lshrrev_b32 v{T}, 5, v1\nv_lshlrev_b32 v{T}, 4, v{T}\nv_bfe_u32 v{T+1}, v1, 4, 1\nv_lshlrev_b32 v{T+1}, 2, v{T+1}\nv_add_u32 v{T}, v{T}, v{T+1}")
A(f"v_bfe_u32 v{T+1}, v1, 2, 2\nv_add_u32 v{T}, v{T}, v{T+1}\nv_mul_u32_u24 v{T}, 160, v{T}\nv_and_b32 v{T+1}, 3, v1\nv_lshlrev_b32 v{T+1}, 3, v{T+1}\nv_add_u32 v{T}, v{T}, v{T+1}")
A(f"s_mul_i32 s46, s41, 20480\nv_add_u32 v{PT}, s46, v{T}\nv_add_u32 v{PT+1}, {2*STG}, v{PT}")
A(f"v_and_b32 v{PO}, 15, v1\ns_lshl_b32 s46, s62, 6\ns_lshl_b32 s47, s40, 5\ns_add_u32 s46, s46, s47\ns_lshl_b32 s47, s41, 4\ns_add_u32 s46, s46, s47\nv_add_u32 v{PO}, s46, v{PO}\nv_mul_u32_u24 v{PO}, 1280, v{PO}")
A(f"v_lshrrev_b32 v{T}, 4, v1\nv_lshlrev_b32 v{T}, 3, v{T}\nv_add_u32 v{PO}, v{PO}, v{T}\ns_mul_i32 s46, s63, 160\nv_add_u32 v{PO}, s46, v{PO}")
NE = args.cpf
if args.cpf == 3:
    A("s_mul_i32 s46, s67, 12\ns_mul_i32 s47, s38, 3\ns_add_u32 s46, s46, s47")
    A("s_mul_i32 s47, s67, 6\ns_add_u32 s47, s47, 96\ns_lshl_b32 s48, s38, 1\ns_add_u32 s47, s47, s48")
    A("s_cmp_lt_u32 s38, 3\ns_cselect_b32 s54, 2, 0\ns_cmp_lt_u32 s67, 16\ns_cselect_b32 s48, s46, s47\ns_cselect_b32 s54, 3, s54")
    A("s_cmp_lt_u32 s67, 32\ns_cselect_b32 s54, s54, 0\ns_cselect_b32 s48, s48, 0")
else:
    A("s_lshl_b32 s48, s67, 4\ns_lshl_b32 s47, s38, 2\ns_add_u32 s48, s48, s47\ns_cmp_lt_u32 s67, 32\ns_cselect_b32 s54, 4, 0\ns_cselect_b32 s48, s48, 0")
A("s_lshl_b32 s46, s48, 6\ns_mul_i32 s49, s59, 160\ns_mov_b32 s50, 52429")
for e in range(NE):
    A(f"v_add_u32 v{T}, s46, v1")
    if e: A(f"v_add_u32 v{T}, {64*e}, v{T}")
    A(f"v_mul_lo_u32 v{T+1}, v{T}, s50\nv_lshrrev_b32 v{T+1}, 19, v{T+1}")
    A(f"v_mul_u32_u24 v{T+2}, 10, v{T+1}\nv_sub_u32 v{T+2}, v{T}, v{T+2}\nv_lshlrev_b32 v{T+2}, 4, v{T+2}")
    A(f"v_lshrrev_b32 v{T+3}, 5, v{T+1}\nv_subrev_u32 v{T+4}, 24, v{T+3}\nv_cmp_gt_u32 vcc, 24, v{T+3}\nv_mov_b32 v{T+5}, 768\ns_nop 0")
    A(f"v_cndmask_b32 v{T+3}, v{T+4}, v{T+3}, vcc\nv_cndmask_b32 v{T+5}, v{T+5}, v13, vcc")
    A(f"v_and_b32 v{T+4}, 7, v{T+3}\nv_mul_u32_u24 v{T+4}, 96, v{T+4}\nv_add_u32 v{T+5}, v{T+5}, v{T+4}")
    A(f"v_lshrrev_b32 v{T+4}, 3, v{T+3}\nv_lshlrev_b32 v{T+4}, 4, v{T+4}\nv_add_u32 v{T+5}, v{T+5}, v{T+4}")
    A(f"v_bfe_u32 v{T+4}, v{T+1}, 4, 1\nv_mul_u32_u24 v{T+4}, 48, v{T+4}\nv_add_u32 v{T+5}, v{T+5}, v{T+4}")
    A(f"v_and_b32 v{T+4}, 15, v{T+1}\nv_add_u32 v{T+5}, v{T+5}, v{T+4}")
    A(f"v_mul_u32_u24 v{T+5}, 1280, v{T+5}\nv_add_u32 v{249+e}, v{T+5}, v{T+2}")
A(f"s_mul_i32 s50, s59, 240\ns_add_u32 s50, s50, s48\ns_lshl_b32 s50, s50, 10\ns_add_u32 s50, s50, {WDP_OFF}")

def xreg(s, mi): return FR + 40*(s & 1) + 4*mi
def wreg(s, t, u): return FR + 40*(s & 1) + 16 + 4*(2*t + u)
def reads(s):
    c, ks = s >> 1, s & 1
    st = c % 3
    hi = 1 if st >= 2 else 0
    so = (st & 1) * STG
    r = []
    def rw(t, u):
        for rr in range(2):
            d = wreg(s, t, u) + 2*rr
            r.append(f"ds_read_b64_tr_b16 v[{d}:{d+1}], v{VW+3*hi+t} offset:{so + 6144*ks + 768*rr + 12288*u}")
    def rx(mi):
        d = xreg(s, mi)
        r.append(f"ds_read_b128 v[{d}:{d+3}], v{VX+2*hi+ks} offset:{so + 2048*mi}")
    rw(0, 0); rx(0); rx(1); rx(2); rx(3); rw(0, 1); rw(1, 0); rw(1, 1); rw(2, 0); rw(2, 1)
    return r
def mfma(s, mi, t, u):
    a = ACC + 4*((mi*3 + t)*2 + u)
    wa, xa = wreg(s, t, u), xreg(s, mi)
    c = "0" if s == 0 else f"v[{a}:{a+3}]"
    return f"v_mfma_f32_16x16x32_bf16 v[{a}:{a+3}], v[{wa}:{wa+3}], v[{xa}:{xa+3}], {c}"
def mfmas(s):
    if args.snake == 1:
        return [mfma(s, (mi if u == 0 else 3 - mi), t, u) for t in range(3) for u in range(2) for mi in range(4)]
    if args.snake == 2:
        tus = [(t, u) for t in range(3) for u in range(2)]
        return [mfma(s, mi, *(tus[k] if mi % 2 == 0 else tus[5 - k])) for mi in range(4) for k in range(6)]
    return [mfma(s, mi, t, u) for t in range(3) for u in range(2) for mi in range(4)]
def copy_ops(s):
    if s == CPS[0]:
        for e in range(NE):
            A(f"s_cmp_le_u32 s54, {e}\ns_cbranch_scc1 L_nocp1")
            A(f"buffer_load_dwordx4 v[{224+4*e}:{227+4*e}], v{249+e}, s[28:31], s49 offen")
        A("L_nocp1:")
    if s == CPS[1]:
        A("s_waitcnt vmcnt(0)")
        for e in range(NE):
            A(f"s_cmp_le_u32 s54, {e}\ns_cbranch_scc1 L_nocp2")
            A(f"buffer_store_dwordx4 v[{224+4*e}:{227+4*e}], v{PL}, s[32:35], s50 offen offset:{1024*e} sc1")
        A("L_nocp2:")
A("s_barrier")
stamp(1, VST)
for r in reads(0):
    A(r)
for s in range(18):
    m = mfmas(s)
    nx = reads(s + 1)
    A("s_waitcnt lgkmcnt(0)")
    i0 = 0
    if s & 1:
        for x in m[:4]: A(x)
        if s == CPS[2]: A("s_waitcnt vmcnt(0)")
        if args.cbar and s in (13, 17): stamp(11 if s == 13 else 13, VST)
        A("s_barrier")
        if args.cbar and s in (13, 17): stamp(12 if s == 13 else 14, VST)
        if args.cpos < 0: copy_ops(s)
        if s == 17:
            A("s_load_dword s65, s[14:15], 0")
        i0 = 4
    k = 0
    for i in range(i0, 24):
        A(m[i])
        if k < 16:
            A(nx[k]); k += 1
        if i == args.cpos: copy_ops(s)
for r in reads(19):
    A(r)
units = [(t, mp) for t in range(3) for mp in range(2)]
def epi(k):
    t, mp = units[k]
    o = 224 + 4*k
    TT = T + 8*(k & 1)
    e = []
    ga = [ACC + 4*(((2*mp + (j >> 2))*3 + t)*2 + 0) + (j & 3) for j in range(8)]
    ua = [ACC + 4*(((2*mp + (j >> 2))*3 + t)*2 + 1) + (j & 3) for j in range(8)]
    for j in range(0, 8, 2): e.append(f"v_pk_mul_f32 v[{TT+j}:{TT+j+1}], v[{ga[j]}:{ga[j]+1}], s[82:83]")
    for j in range(8): e.append(f"v_exp_f32 v{TT+j}, v{TT+j}")
    for j in range(0, 8, 2): e.append(f"v_pk_add_f32 v[{TT+j}:{TT+j+1}], v[{TT+j}:{TT+j+1}], s[84:85]")
    for j in range(8): e.append(f"v_rcp_f32 v{TT+j}, v{TT+j}")
    for j in range(0, 8, 2): e.append(f"v_pk_mul_f32 v[{TT+j}:{TT+j+1}], v[{TT+j}:{TT+j+1}], v[{ua[j]}:{ua[j]+1}]")
    for j in range(4): e.append(f"v_cvt_pk_bf16_f32 v{o+j}, v{TT+2*j}, v{TT+2*j+1}")
    e.append("s_nop 1")
    e.append(f"v_permlane32_swap_b32 v{o}, v{o+2}")
    e.append(f"v_permlane32_swap_b32 v{o+1}, v{o+3}")
    e.append(f"buffer_store_dwordx4 v[{o}:{o+3}], v{VH}, s[32:35], s{76+2*t+mp} offen sc1")
    return e
A("s_waitcnt lgkmcnt(0)")
A("s_barrier")
stamp(2, VST)
mstream = [mfma(s, 2*mp + mm, t, u) for (t, mp) in units for s in (18, 19) for u in range(2) for mm in range(2)]
for x in mstream[:8]:
    A(x)
A("s_mov_b32 s66, 0\ns_cmp_lg_u32 s65, 0\ns_cbranch_scc1 L_havenonce")
A("L_nloop:")
A("buffer_load_dword v14, v13, s[72:75], 0 offen sc1\ns_waitcnt vmcnt(0)\nv_readfirstlane_b32 s65, v14\ns_add_u32 s66, s66, 1")
A(f"s_cmp_gt_u32 s66, {SPIN}\ns_cbranch_scc1 L_havenonce\ns_cmp_eq_u32 s65, 0\ns_cbranch_scc1 L_nloop")
A("L_havenonce:")
A("s_mov_b32 s86, 0\ns_mov_b32 s87, 128\ns_mov_b32 s88, 256")
A("v_mov_b32 v2, s65")
for x in mstream[8:16]:
    A(x)
rem = mstream[16:]
cv = []
def cwait(tag):
    last = max(i for i, t in enumerate(cv) if t == tag)
    return len(cv) - 1 - last
def flag(stage):
    A(f"s_waitcnt vmcnt({cwait(('st', 2*stage + 1))})")
    A(f"buffer_store_dword v2, v{PF}, s[32:35], s{86+stage} offen sc1"); cv.append(("fl", stage))
for k in range(6):
    e = epi(k)
    ms = rem[8*k:8*k+8]
    pos = [1, 4, 7, 10, 13, 16, 19, 22]
    for i, x in enumerate(e):
        if ms and i in pos:
            A(ms[pos.index(i)])
        A(x)
    cv.append(("st", k))
    if k == args.f0at: flag(0)
stamp(3, VST)
flag(1)
A("s_barrier")
WD = 16
HRL = [176, 184, 192, 200, 6][:args.nh]
NH = len(HRL)
ACC2 = 216
def wdreg(i, n): return WD + 20*(i % 8) + 4*n
def wd_reads(i):
    jj, s = i >> 2, i & 3
    sl = WSLOT[jj]
    va = PT + 1 if sl >= 2 else PT
    so = (sl & 1) * STG
    r = []
    for n in range(5):
        for rr in range(2):
            d = wdreg(i, n) + 2*rr
            r.append(f"ds_read_b64_tr_b16 v[{d}:{d+1}], v{va} offset:{so + 5120*s + 32*n + 1280*rr}")
    return r
for i in range(8):
    if (args.p0early == 2 and i == 0) or (args.p0early == 3 and i == 4):
        flag(2)
        A(POLL(86)); cv.append(("p", 0))
    for r in wd_reads(i): A(r)
if args.p0early < 2: flag(2)
stamp(4, VST)
if args.p0early == 1: A(POLL(86)); cv.append(("p", 0))
A("s_waitcnt lgkmcnt(0)")
A("s_barrier")
stamp(5, VST)
def check(stage):
    A("s_mov_b32 s66, 0")
    A(f"L_chk{stage}:")
    A(f"v_cmp_ne_u32 vcc, s65, v5\ns_add_u32 s66, s66, 1\ns_nop 0")
    A(f"s_cmp_eq_u64 vcc, 0\ns_cbranch_scc1 L_go{stage}\ns_cmp_gt_u32 s66, {SPIN}\ns_cbranch_scc1 L_go{stage}\ns_sleep {args.sleep}")
    A(POLL(86+stage) + f"\ns_waitcnt vmcnt(0)\ns_branch L_chk{stage}")
    A(f"L_go{stage}:")
if not args.p0early: A(POLL(86)); cv.append(("p", 0))
A("s_waitcnt vmcnt(0)")
check(0)
stamp(6, VST)
def hreg(i, mm): return HRL[i % NH] + 4*mm
def h_loads(i):
    jj, s = i >> 2, i & 3
    if s == 0: A(f"s_xor_b32 s58, s89, {jj}\ns_lshl_b32 s58, s58, 12")
    for mm in range(2):
        A(f"buffer_load_dwordx4 v[{hreg(i,mm)}:{hreg(i,mm)+3}], v{PH+mm}, s[32:35], s58 offen offset:{1024*s} sc1"); cv.append(("h", i))
def poll(stage):
    A(POLL(86+stage)); cv.append(("p", len(cv)))
    return cv[-1]
for i in range(NH):
    h_loads(i)
if args.p1at < 0: ptag = poll(1)
if args.tail2:
    def p2mfma(i, n, mm):
        a = ACC2 + 4*(5*mm + n)
        c = "0" if i == 0 else f"v[{a}:{a+3}]"
        return f"v_mfma_f32_16x16x32_bf16 v[{a}:{a+3}], v[{wdreg(i,n)}:{wdreg(i,n)+3}], v[{hreg(i,mm)}:{hreg(i,mm)+3}], {c}"
    OF = (" " + args.outflag) if args.outflag else ""
    for i in range(22):
        if i == 4*NCERT - 2:
            A("s_barrier")
        lg = " lgkmcnt(10)" if 8 <= i else ""
        A(f"s_waitcnt vmcnt({cwait(('h', i))}){lg}")
        if i == 0: stamp(7, VST)
        if i == args.p1at: ptag = poll(1)
        rd = wd_reads(i + 2) if 8 <= i + 2 < 24 else []
        k = 0
        for n in range(5):
            for mm in range(2):
                A(p2mfma(i, n, mm))
                if k < len(rd):
                    A(rd[k]); k += 1
        j = i + NH
        if j < 24:
            if j % 8 == 0:
                A(f"s_waitcnt vmcnt({cwait(ptag)})")
                check(j // 8)
            h_loads(j)
            if j == 16 - NH:
                ptag = poll(2)
        if i == 20:
            A(f"s_mul_i32 s46, s38, 5120\nv_add_u32 v2, s46, v{PL}")
            A(f"s_xor_b32 s47, s38, 2\ns_mul_i32 s47, s47, 5120\nv_add_u32 v3, s47, v{PL}")
            if args.wide:
                A(f"v_bfe_u32 v4, v1, 4, 1\nv_mul_u32_u24 v4, 24, v4\nv_add_u32 v4, v4, v{PO}")
    A(f"s_waitcnt vmcnt({cwait(('h', 22))}) lgkmcnt(10)")
    for n in range(5): A(p2mfma(22, n, 0))
    A("s_waitcnt vmcnt(0) lgkmcnt(0)")
    A("s_barrier")
    M = [p2mfma(23, n, 0) for n in range(5)] + [p2mfma(22, n, 1) for n in range(5)] + [p2mfma(23, n, 1) for n in range(5)]
    for k, x in enumerate(M):
        A(x)
        if 9 <= k < 14:
            n = k - 9
            A(f"ds_write_b128 v3, v[{ACC2+4*n}:{ACC2+4*n+3}] offset:{1024*n}")
    stamp(8, VST)
    A("s_waitcnt lgkmcnt(0)\ns_barrier")
    for n in range(5):
        A(f"ds_read_b128 v[{16+4*n}:{19+4*n}], v2 offset:{1024*n}")
    for n in range(5):
        a = ACC2 + 4*(5 + n)
        A(f"s_waitcnt lgkmcnt({4-n})")
        for r in range(4):
            A(f"v_add_f32 v{16+4*n+r}, v{16+4*n+r}, v{a+r}")
        A(f"v_cvt_pk_bf16_f32 v{40+2*n}, v{16+4*n}, v{17+4*n}\nv_cvt_pk_bf16_f32 v{41+2*n}, v{18+4*n}, v{19+4*n}")
        if args.wide and n < 4:
            if n & 1:
                o = 40 + 2*(n - 1)
                A(f"s_nop 1\nv_permlane16_swap_b32 v{o}, v{o+2}\nv_permlane16_swap_b32 v{o+1}, v{o+3}")
                A(f"buffer_store_dwordx4 v[{o}:{o+3}], v4, s[68:71], 0 offen offset:{32*(n-1)}{OF}")
        else:
            A(f"buffer_store_dwordx2 v[{40+2*n}:{41+2*n}], v{PO}, s[68:71], 0 offen offset:{32*n}{OF}")
else:
    for i in range(24):
        if i == 4*NCERT - 2:
            A("s_barrier")
        lg = " lgkmcnt(10)" if 8 <= i < 23 else (" lgkmcnt(0)" if i == 23 else "")
        A(f"s_waitcnt vmcnt({cwait(('h', i))}){lg}")
        if i == 0: stamp(7, VST)
        if i == args.p1at: ptag = poll(1)
        if i == 23:
            A("s_barrier")
        rd = wd_reads(i + 2) if 8 <= i + 2 < 24 else []
        k = 0
        for n in range(5):
            for mm in range(2):
                a = ACC2 + 4*(5*mm + n)
                c = "0" if i == 0 else f"v[{a}:{a+3}]"
                A(f"v_mfma_f32_16x16x32_bf16 v[{a}:{a+3}], v[{wdreg(i,n)}:{wdreg(i,n)+3}], v[{hreg(i,mm)}:{hreg(i,mm)+3}], {c}")
                if k < len(rd):
                    A(rd[k]); k += 1
        j = i + NH
        if j < 24:
            if j % 8 == 0:
                A(f"s_waitcnt vmcnt({cwait(ptag)})")
                check(j // 8)
            h_loads(j)
            if j == 16 - NH:
                ptag = poll(2)
    stamp(8, VST)
    A(f"s_mul_i32 s46, s38, 5120\nv_add_u32 v10, s46, v{PL}")
    A(f"s_xor_b32 s47, s38, 2\ns_mul_i32 s47, s47, 5120\nv_add_u32 v11, s47, v{PL}")
    A("s_nop 4")
    A("s_cmp_eq_u32 s41, 0\ns_cbranch_scc0 L_kh1")
    OF = (" " + args.outflag) if args.outflag else ""
    for kh in range(2):
        if kh == 1: A("L_kh1:")
        snd = 1 - kh
        for n in range(5):
            a = ACC2 + 4*(5*snd + n)
            A(f"ds_write_b128 v11, v[{a}:{a+3}] offset:{1024*n}")
        A("s_waitcnt lgkmcnt(0)\ns_barrier")
        for n in range(5):
            A(f"ds_read_b128 v[{16+4*n}:{19+4*n}], v10 offset:{1024*n}")
        for n in range(5):
            a = ACC2 + 4*(5*kh + n)
            A(f"s_waitcnt lgkmcnt({4-n})")
            for r in range(4):
                A(f"v_add_f32 v{16+4*n+r}, v{16+4*n+r}, v{a+r}")
            A(f"v_cvt_pk_bf16_f32 v{40+2*n}, v{16+4*n}, v{17+4*n}\nv_cvt_pk_bf16_f32 v{41+2*n}, v{18+4*n}, v{19+4*n}")
            A(f"buffer_store_dwordx2 v[{40+2*n}:{41+2*n}], v{PO}, s[68:71], 0 offen offset:{32*n}{OF}")
        if kh == 0:
            A("s_branch L_fin")
A("L_fin:")
stamp(9, VST)
if STAMPS or PROBE:
    A("s_waitcnt vmcnt(0)")
stamp(10, VST)
if PROBE:
    A("s_memrealtime s[46:47]\ns_waitcnt lgkmcnt(0)\ns_sub_u32 s48, s94, s92\ns_min_u32 s48, s48, 10000\ns_add_u32 s48, s48, s46")
    A("L_pspin:\ns_memrealtime s[46:47]\ns_waitcnt lgkmcnt(0)\ns_sub_u32 s49, s48, s46\ns_cmp_gt_i32 s49, 0\ns_cbranch_scc1 L_pspin")
store_stamps(VST, 16, 0, "L_st0", 38, 0)
A("s_endpgm")
A("L_codeend:")

out.append('.section .rodata,"a"\n.p2align 6')
out.append(f""".amdhsa_kernel {KN}
  .amdhsa_next_free_vgpr 256
  .amdhsa_next_free_sgpr 100
  .amdhsa_accum_offset 256
  .amdhsa_group_segment_fixed_size 0
  .amdhsa_kernarg_size 56
  .amdhsa_user_sgpr_count 2
  .amdhsa_user_sgpr_kernarg_segment_ptr 1
  .amdhsa_system_sgpr_workgroup_id_x 1
.end_amdhsa_kernel""")
print("\n".join(out))
```

```python
import sys, argparse
ap = argparse.ArgumentParser()
ap.add_argument("--stamps", action="store_true")
ap.add_argument("--ser", type=int, default=0)
ap.add_argument("--thr", type=int, default=10)
ap.add_argument("--thr2", type=int, default=6)
ap.add_argument("--wdat", default="9:6,10:5")
ap.add_argument("--n11", type=int, default=40)
ap.add_argument("--chk", type=int, default=8)
ap.add_argument("--cps", default="4,6,9")
ap.add_argument("--sleep", type=int, default=4)
ap.add_argument("--f0at", type=int, default=4, help="F0 goes after this unit's store")
ap.add_argument("--nh", type=int, default=5)
ap.add_argument("--cpf", type=int, default=3, help="blocks per wave, fast WGs (3 -> medium WGs do the rest, 4 -> fast only (15 of 16))")
ap.add_argument("--outflag", default="")
ap.add_argument("--tail2", type=int, default=1)
ap.add_argument("--ch1", type=int, default=1)
ap.add_argument("--ch2", type=int, default=0)
ap.add_argument("--hla", type=int, default=6, help="ch2: h loads outstanding beyond current pair (steps)")
ap.add_argument("--clk", type=int, default=0)
ap.add_argument("--chain", type=int, default=0, help="DIAGNOSTIC (wrong math): pairs of MFMAs on the same accumulator")
ap.add_argument("--swapr", type=int, default=0)
ap.add_argument("--p1dual", type=int, default=0)
ap.add_argument("--p2at", type=int, default=11, help="h-load index after which stage-2 poll is issued")
ap.add_argument("--rot4", type=int, default=0)
ap.add_argument("--mwarm", type=int, default=-1, help="barrier before which non-copy WGs touch Wd (MALL warm)")
ap.add_argument("--xfirst", type=int, default=0)
ap.add_argument("--wide", type=int, default=1)
ap.add_argument("--pro2", type=int, default=1)
ap.add_argument("--cwarm", type=int, default=0, help="lines of code each WG pulls into L2 at start")
ap.add_argument("--wsoff", type=int, default=0, help="MB offset of the used ws window")
ap.add_argument("--touch", type=int, default=0, help="scalar TLB pre-touch stride in KB (test)")
ap.add_argument("--touchat", type=int, default=-1)
ap.add_argument("--warm", type=int, default=0, help="producers pre-write their flag lines at start")
ap.add_argument("--pollmode", default="sc1")
ap.add_argument("--cbar", type=int, default=0, help="stamp C around barriers at steps 13,17 into 11..14")
ap.add_argument("--swp", type=int, default=0, help="pairwise chunk swap by parity in phase 2")
ap.add_argument("--lprio", type=int, default=0)
ap.add_argument("--cprio", type=int, default=0)
ap.add_argument("--cpos", type=int, default=16, help="mfma index inside the step after which copy ops are placed (-1: right after barrier)")
ap.add_argument("--snake", type=int, default=0)
ap.add_argument("--thr3", type=int, default=0, help="throttle for Wd ops after B12 (0: same as thr2)")
ap.add_argument("--probe", default="", help="i,j : C waves spin at the end for (t_j - t_i) [diagnostic]")
ap.add_argument("--p0early", type=int, default=0)
ap.add_argument("--p1at", type=int, default=0, help="step at whose start the stage-1 poll is issued (-1: with first loads)")
args = ap.parse_args()
STAMPS = args.stamps

out = []
def A(s):
    for l in s.split("\n"):
        out.append("    " + l if l and not l.endswith(":") and not l.startswith(".") and not l.startswith(";") else l)

HDR = open("standalone__glu_gated_glu__prompt.s.ref").read().split("\n")
for l in HDR[:8]:
    out.append(l)
KN = "standalone__glu_gated_glu__prompt_kernel"
out.append(f"; @launch grid=(256,1,1) block=(512,1,1) lds=163840")
A('.amdgcn_target "amdgcn-amd-amdhsa--gfx950"')
A(".text")

FLAG_OFF = 0x700000
WFLAG_OFF = 0x780000
WDP_OFF = 0x800000
STAMP_OFF = 192 << 20
STG = 40960
SPIN = 0x100000
CPS = [int(x) for x in args.cps.split(",")]

def srd(r, lo, hi, size):
    if r == 32 and args.wsoff:
        A(f"s_add_u32 s32, s36, {args.wsoff << 20}\ns_addc_u32 s33, s37, 0\ns_mov_b32 s34, {0x10000000 - (args.wsoff << 20)}\ns_mov_b32 s35, 0x20000")
        return
    A(f"s_mov_b32 s{r}, s{lo}\ns_mov_b32 s{r+1}, s{hi}\ns_mov_b32 s{r+2}, {size}\ns_mov_b32 s{r+3}, 0x20000")

PROBE = [int(x) for x in args.probe.split(",")] if args.probe else []
def POLL(sreg):
    if args.pollmode == "atomic":
        return f"v_mov_b32 v5, s65\ns_mov_b64 exec, 0xffff\nv_mov_b32 v5, 0\nbuffer_atomic_or v5, v209, s[32:35], s{sreg} offen sc0 sc1\ns_mov_b64 exec, -1"
    return f"buffer_load_dword v5, v209, s[32:35], s{sreg} offen {args.pollmode}"
def stamp(i, vreg):
    if PROBE and vreg == 15 and i in PROBE:
        r = 92 + 2*PROBE.index(i)
        A(f"s_memrealtime s[{r}:{r+1}]\ns_waitcnt lgkmcnt(0)")
    if STAMPS and args.clk:
        A(f"s_memrealtime s[90:91]\ns_memtime s[96:97]\ns_waitcnt lgkmcnt(0)\nv_writelane_b32 v{vreg}, s90, {2*i}\nv_writelane_b32 v{vreg}, s91, {2*i+1}\nv_writelane_b32 v{vreg}, s96, {32+2*i}\nv_writelane_b32 v{vreg}, s97, {33+2*i}")
    elif STAMPS:
        A(f"s_memrealtime s[90:91]\ns_waitcnt lgkmcnt(0)\nv_writelane_b32 v{vreg}, s90, {2*i}\nv_writelane_b32 v{vreg}, s91, {2*i+1}")

def store_stamps(vreg, vtmp, rec, label, wave_sreg, wavesel):
    if not STAMPS:
        return
    A(f"s_cmp_lg_u32 s{wave_sreg}, {wavesel}\ns_cbranch_scc1 {label}")
    A(f"s_lshl_b32 s90, s2, 7\ns_add_u32 s90, s90, {STAMP_OFF + rec*256*128}\nv_lshlrev_b32 v{vtmp}, 2, v1\nv_add_u32 v{vtmp}, s90, v{vtmp}")
    if args.clk:
        A(f"v_lshrrev_b32 v{vtmp+1}, 5, v1\nv_mul_u32_u24 v{vtmp+1}, {2*256*128 - 128}, v{vtmp+1}\nv_add_u32 v{vtmp}, v{vtmp}, v{vtmp+1}\nbuffer_store_dword v{vreg}, v{vtmp}, s[32:35], 0 offen")
    else:
        A(f"s_mov_b64 exec, 0xffffffff\nbuffer_store_dword v{vreg}, v{vtmp}, s[32:35], 0 offen")
    A(f"{label}:")

A(f".globl {KN}\n.p2align 8\n.type {KN},@function\n{KN}:")
if args.pro2:
    A("s_load_dwordx2 s[16:17], s[0:1], 0\ns_load_dwordx2 s[20:21], s[0:1], 8\ns_load_dwordx2 s[24:25], s[0:1], 16")
    A("s_load_dwordx2 s[10:11], s[0:1], 24")
else:
    A("s_load_dwordx8 s[4:11], s[0:1], 0")
A("s_load_dwordx4 s[12:15], s[0:1], 32")
A("s_load_dwordx2 s[36:37], s[0:1], 48")
A("s_cmp_ge_u32 s2, 256\ns_cbranch_scc1 L_end")
if PROBE and PROBE[0] == -1: A("s_memrealtime s[92:93]")
A("v_and_b32 v1, 63, v0\nv_lshrrev_b32 v2, 6, v0")
A("s_and_b32 s40, s2, 7\ns_lshr_b32 s41, s2, 3")
if args.swapr: A("v_xor_b32 v2, 4, v2\ns_nop 0")
A("v_readfirstlane_b32 s38, v2")
A("s_and_b32 s60, s40, 1\ns_lshl_b32 s60, s60, 3\ns_and_b32 s42, s41, 7\ns_add_u32 s60, s60, s42")
A("s_lshr_b32 s61, s40, 1\ns_lshl_b32 s61, s61, 2\ns_lshr_b32 s43, s41, 3\ns_add_u32 s61, s61, s43")
A("s_lshl_b32 s64, s61, 1\ns_add_u32 s64, s64, s60\ns_and_b32 s64, s64, 7")
A("s_cmp_lt_u32 s38, 4\ns_cbranch_scc1 L_compute")

def common2():
    A("s_and_b32 s62, s40, 3\ns_lshl_b32 s62, s62, 3\ns_add_u32 s62, s62, s42")
    A("s_lshr_b32 s63, s40, 2\ns_lshl_b32 s63, s63, 2\ns_add_u32 s63, s63, s43")
    A("s_lshr_b32 s44, s64, 2\ns_lshl_b32 s45, s43, 1\ns_add_u32 s45, s45, s44")
    A("s_lshl_b32 s46, s45, 1\ns_and_b32 s47, s64, 1\ns_add_u32 s46, s46, s47\ns_add_u32 s45, s45, 16")
    A("s_bitcmp1_b32 s64, 1\ns_cselect_b32 s67, s45, s46")
    A("s_and_b32 s47, s64, 3\ns_cmp_eq_u32 s47, 3\ns_cselect_b32 s67, 255, s67")
    if args.cpf == 4:
        A("s_cmp_ge_u32 s67, 15\ns_cselect_b32 s67, 255, s67")
    if args.rot4 == 1: A("s_add_u32 s89, s62, s63\ns_and_b32 s89, s89, 3")
    elif args.rot4 == 2: A("s_and_b32 s89, s63, 3")
    elif args.swp: A("s_add_u32 s89, s62, s63\ns_and_b32 s89, s89, 1")
    else: A("s_mov_b32 s89, 0")
NWF = 24 if args.cpf == 3 else 15

A("s_sub_u32 s39, s38, 4")
if args.lprio: A(f"s_setprio {args.lprio}")
A("v_lshrrev_b32 v10, 3, v1\nv_and_b32 v11, 7, v1\nv_lshrrev_b32 v12, 4, v1\nv_xor_b32 v13, v11, v12\nv_xor_b32 v14, 4, v13")
A("s_lshl_b32 s46, s60, 7\ns_lshl_b32 s47, s39, 5\ns_add_u32 s46, s46, s47\ns_mul_i32 s46, s46, 1280")
A("v_mul_u32_u24 v10, 1280, v10\nv_add_u32 v10, s46, v10\nv_lshlrev_b32 v13, 4, v13\nv_lshlrev_b32 v14, 4, v14")
A("v_add_u32 v2, v10, v13\nv_add_u32 v3, v10, v14")
A(f"v_add_u32 v4, {2*10240 - 2*1024}, v2\nv_add_u32 v5, {3*10240 - 3*1024}, v3\nv_add_u32 v3, {10240 - 1024}, v3")
A("s_mul_i32 s46, s61, 192\ns_mul_i32 s47, s39, 16*3072\ns_add_u32 s46, s46, s47")
for j in range(3):
    A(f"v_add_u32 v10, {64*j}, v1\nv_mul_u32_u24 v11, 171, v10\nv_lshrrev_b32 v11, 11, v11")
    A("v_mul_u32_u24 v12, 12, v11\nv_sub_u32 v12, v10, v12")
    A("v_mul_u32_u24 v13, 3072, v11\nv_add_u32 v13, s46, v13")
    if j: A(f"v_subrev_u32 v13, {1024*j}, v13")
    A(f"v_lshlrev_b32 v12, 4, v12\nv_and_b32 v14, 8, v11\nv_lshlrev_b32 v14, 2, v14\nv_xor_b32 v12, v12, v14\nv_add_u32 v{6+j}, v13, v12")
A("s_lshl_b32 s48, s39, 12")
A("s_mul_i32 s49, s39, 3072\ns_add_u32 s49, s49, 16384")
A("s_add_u32 s50, s49, 12288")
A("s_mul_i32 s55, s64, 10\ns_lshr_b32 s55, s55, 3")
if args.pro2:
    A("s_mov_b32 s18, 2621440\ns_mov_b32 s19, 0x20000\ns_mov_b32 s22, 1966080\ns_mov_b32 s23, 0x20000\ns_mov_b32 s26, 1966080\ns_mov_b32 s27, 0x20000")
else:
    A("s_waitcnt lgkmcnt(0)")
    srd(16, 4, 5, 2621440)
    srd(20, 6, 7, 1966080)
    srd(24, 8, 9, 1966080)
ops = []
def pre_k(c): return f"s_add_u32 s56, s55, {c}\ns_sub_u32 s57, s56, 10\ns_cmp_ge_u32 s56, 10\ns_cselect_b32 s56, s57, s56\n"
def xops(c, both):
    st = (c % 3) * STG
    r = []
    for j in range(4):
        p = (pre_k(c) + "s_lshl_b32 s51, s56, 7\n" + ("s_mul_i32 s52, s56, 64*3072\n" if both else "") + f"s_add_u32 m0, s48, {st}") if j == 0 else ""
        r.append((c, p, f"buffer_load_dwordx4 v{2+j}, s[16:19], s51 offen offset:{1024*j} lds"))
    return r
def wops(c, own):
    st = (c % 3) * STG
    r = []
    for j in range(3):
        p = ((pre_k(c) + "s_mul_i32 s52, s56, 64*3072\n" if own else "") + f"s_add_u32 m0, s49, {st}") if j == 0 else ""
        r.append((c, p, f"buffer_load_dwordx4 v{6+j}, s[20:23], s52 offen offset:{1024*j} lds"))
    for j in range(3):
        p = f"s_add_u32 m0, s50, {st}" if j == 0 else ""
        r.append((c, p, f"buffer_load_dwordx4 v{6+j}, s[24:27], s52 offen offset:{1024*j} lds"))
    return r
if args.xfirst == 1:
    ops = xops(0, True) + wops(0, False) + xops(1, False) + xops(2, False) + wops(1, True) + wops(2, True)
    c0 = 3
elif args.xfirst == 2:
    ops = xops(0, True) + wops(0, False) + xops(1, True) + wops(1, False)[:0] + xops(2, False) + wops(1, True) + wops(2, True)
    ops = wops(0, True) + xops(0, False) + xops(1, False) + xops(2, False) + wops(1, True) + wops(2, True)
    c0 = 3
else:
    c0 = 0
for c in range(c0, 10):
    ops += xops(c, True) + wops(c, False)
LASTOP = [max(i for i, o in enumerate(ops) if o[0] == c) for c in range(10)]
vm = []
def emit_op(op, thr):
    c, p, ins = op
    if p: A(p)
    if len(vm) >= thr:
        A(f"s_waitcnt vmcnt({thr-1})")
    elif p:
        A("s_waitcnt lgkmcnt(0)" if (args.pro2 and not vm) else "s_nop 0")
    A(ins); vm.append(("c", c))
def wait_for(tag):
    last = max(i for i, t in enumerate(vm) if t == tag)
    A(f"s_waitcnt vmcnt({len(vm) - 1 - last})")
for op in ops[:args.thr]:
    emit_op(op, args.thr)
srd(32, 36, 37, 0x10000000)
srd(72, 14, 15, 256)
if STAMPS: A("v_mov_b32 v40, 0")
stamp(0, 40)
common2()
if args.rot4: A("s_and_b32 s47, s39, 1\ns_add_u32 s89, s89, s47")
A("s_lshr_b32 s46, s39, 1\ns_mul_i32 s46, s46, 24\ns_and_b32 s47, s39, " + ("0" if args.rot4 else "1") + "\ns_lshl_b32 s47, s47, 1\ns_add_u32 s46, s46, s47\ns_mul_i32 s47, s63, 48\ns_add_u32 s46, s46, s47\ns_mul_i32 s46, s46, 5120")
A(f"s_add_u32 s46, s46, {WDP_OFF}\nv_lshlrev_b32 v16, 4, v1\nv_add_u32 v16, s46, v16\nv_add_u32 v17, 4096, v16\nv_add_u32 v18, 8192, v16")
A("s_mul_i32 s53, s39, 10240")
A(f"v_min_u32 v19, {NWF-1}, v1\nv_lshlrev_b32 v19, 7, v19\ns_lshl_b32 s46, s63, 12\ns_add_u32 s46, s46, {WFLAG_OFF}\nv_add_u32 v19, s46, v19\nv_mov_b32 v20, 0\nv_mov_b32 v25, 0")
A(f"s_lshl_b32 s46, s40, 5\ns_add_u32 s46, s46, s67\ns_lshl_b32 s46, s46, 7\ns_add_u32 s46, s46, {WFLAG_OFF}")
A("v_and_b32 v27, 31, v1\nv_lshlrev_b32 v27, 2, v27\nv_add_u32 v27, s46, v27")
A("s_cmp_lt_u32 s67, 32\ns_cbranch_scc1 L_w1\nv_mov_b32 v27, -1\nL_w1:\ns_cmp_eq_u32 s39, 0\ns_cbranch_scc1 L_w0\nv_mov_b32 v19, -1\nv_mov_b32 v27, -1\nL_w0:")
if args.warm:
    A("buffer_store_dword v25, v27, s[32:35], 0 offen sc1"); vm.append(("g", -1))
def touch():
    st = args.touch * 1024
    n_ws = (10 << 20) // st
    n_out = (2621440 + st - 1) // st
    tot = n_ws + n_out
    if tot <= 16:
        for k in range(n_ws):
            A(f"s_add_u32 s92, s36, {k*st + 4096}\ns_addc_u32 s93, s37, 0\ns_load_dword s94, s[92:93], 0")
        for k in range(n_out):
            A(f"s_add_u32 s92, s12, {k*st + 4096}\ns_addc_u32 s93, s13, 0\ns_load_dword s94, s[92:93], 0")
    else:
        A(f"s_lshr_b32 s95, s2, 3\ns_lshl_b32 s95, s95, 2\ns_add_u32 s95, s95, s39")
        for r in range((n_ws + 127) // 128):
            A(f"s_add_u32 s96, s95, {128*r}\ns_min_u32 s96, s96, {n_ws-1}\ns_mul_i32 s96, s96, {st}\ns_add_u32 s92, s36, s96\ns_addc_u32 s93, s37, 0\ns_load_dword s94, s[92:93], 0")
        A(f"s_min_u32 s96, s95, {n_out-1}\ns_mul_i32 s96, s96, {st}\ns_add_u32 s92, s12, s96\ns_addc_u32 s93, s13, 0\ns_load_dword s94, s[92:93], 0")
if args.touch and args.touchat < 0: touch()
if args.mwarm >= 0:
    srd(28, 10, 11, 1966080)
    A("s_lshr_b32 s44, s64, 2\ns_lshl_b32 s45, s43, 1\ns_add_u32 s45, s45, s44\ns_lshl_b32 s44, s40, 3\ns_add_u32 s45, s45, s44\ns_lshl_b32 s45, s45, 2\ns_add_u32 s45, s45, s39\ns_mul_i32 s45, s45, 60*128")
    A("v_lshlrev_b32 v28, 7, v1\nv_add_u32 v28, s45, v28\nv_cmp_gt_u32 vcc, 60, v1\ns_nop 1\nv_cndmask_b32 v28, -1, v28, vcc")
    A("s_cmp_eq_u32 s67, 255\ns_cbranch_scc1 L_mw\nv_mov_b32 v28, -1\nL_mw:")
WSLOT = [3, 1, 2, 0, 3, 1]
WFREE = [-1, 8, 9, 10, 12, 12]
wdn = [0]; checked = [False]; lastbar = [-1]
def issue_wd_ops(cnt):
    first = True
    for _ in range(cnt):
        g = wdn[0]; wdn[0] += 1
        jj, n = g // 10, g % 10
        assert lastbar[0] >= WFREE[jj], (jj, lastbar[0])
        assert checked[0]
        st = WSLOT[jj] * STG
        if n == 0:
            if args.rot4: A(f"s_add_u32 s58, s89, {2*(jj&1)}\ns_and_b32 s58, s58, 3\ns_mul_i32 s58, s58, 10240\ns_add_u32 s58, s58, {(jj>>1)*40960}")
            else: A(f"s_xor_b32 s58, s89, {jj}\ns_mul_i32 s58, s58, 20480")
        if n % 4 == 0 or first:
            A(f"s_add_u32 m0, s53, {st + 4096*(n//4)}")
        first = False
        A(f"s_waitcnt vmcnt({(args.thr3 if (args.thr3 and lastbar[0] >= 12) else args.thr2) - 1})")
        A(f"buffer_load_dwordx4 v{16 + n//4}, s[32:35], s58 offen offset:{1024*(n%4)} sc1 lds"); vm.append(("w", jj))
WDAT = dict((int(x.split(":")[0]), int(x.split(":")[1])) for x in args.wdat.split(",") if x)
oi = args.thr
def m0_restore():
    if oi < 100 and not ops[oi][1]:
        k = oi
        while not ops[k][1]: k -= 1
        A(ops[k][1].split("\n")[-1])
for c in range(10):
    tgt = min(100, LASTOP[c] + 1 + args.thr)
    while tgt > 0 and ops[tgt-1][0] > max(c + 1, 2): tgt -= 1
    while oi < tgt:
        emit_op(ops[oi], args.thr); oi += 1
    if c in WDAT and c == 9:
        issue_wd_ops(WDAT[c])
    wait_for(("c", c))
    if c == args.mwarm:
        A("buffer_load_dword v29, v28, s[28:31], 0 offen"); vm.append(("m", 0))
    if c == args.chk - 1:
        A("buffer_load_dword v26, v19, s[32:35], 0 offen sc1"); vm.append(("f", 0))
    if c == args.chk:
        wait_for(("f", 0))
        A("s_cmp_lg_u32 s39, 0\ns_cbranch_scc1 L_wgo\ns_mov_b32 s66, 0")
        A("L_wchk:")
        A("v_cmp_ne_u32 vcc, s65, v26\ns_add_u32 s66, s66, 1\ns_nop 0")
        A(f"s_cmp_eq_u64 vcc, 0\ns_cbranch_scc1 L_wgo\ns_cmp_gt_u32 s66, {SPIN}\ns_cbranch_scc1 L_wgo\ns_sleep 2")
        A("buffer_load_dword v26, v19, s[32:35], 0 offen sc1\ns_waitcnt vmcnt(0)\ns_branch L_wchk")
        A("L_wgo:")
    if c in WDAT and c != 9:
        issue_wd_ops(WDAT[c]); m0_restore()
    A("s_barrier"); lastbar[0] = c
    if c == args.chk:
        checked[0] = True
    if args.touch and c == args.touchat: touch()
    if c == 2:
        A("s_load_dword s65, s[14:15], 0")
    if c == (CPS[2] + 1) // 2:
        A("s_cmp_lg_u32 s39, 0\ns_cbranch_scc1 L_nowf")
        A("s_waitcnt lgkmcnt(0)\ns_mov_b32 s66, 0\ns_cmp_lg_u32 s65, 0\ns_cbranch_scc1 L_wf")
        A("L_wfl:")
        A("buffer_load_dword v25, v20, s[72:75], 0 offen sc1\ns_waitcnt vmcnt(0)\nv_readfirstlane_b32 s65, v25\ns_add_u32 s66, s66, 1")
        A(f"s_cmp_gt_u32 s66, {SPIN}\ns_cbranch_scc1 L_wf\ns_cmp_eq_u32 s65, 0\ns_cbranch_scc1 L_wfl")
        A("L_wf:")
        A("v_mov_b32 v25, s65")
        A("L_nowf:")
        A("buffer_store_dword v25, v27, s[32:35], 0 offen sc1"); vm.append(("g", 0))
    if args.ser: stamp(c + 1, 40)
    elif c in (0, 4, 9): stamp({0: 1, 4: 2, 9: 3}[c], 40)
def lstamp(i):
    if not args.ser: stamp(i, 40)
if 10 in WDAT: issue_wd_ops(WDAT[10])
A("s_barrier"); lastbar[0] = 10
lstamp(7)
issue_wd_ops(args.n11 - wdn[0])
wait_for(("w", 1))
lstamp(4)
A("s_barrier")
NCERT = args.n11 // 10
wait_for(("w", NCERT - 1))
A("s_barrier"); lastbar[0] = 12
lstamp(5)
issue_wd_ops(60 - wdn[0])
A("s_waitcnt vmcnt(0)")
lstamp(6)
A("s_barrier")
store_stamps(40, 41, 1, "L_st1", 39, 0)
A("L_end:")
A("s_endpgm")

A("L_compute:")
if args.cprio: A(f"s_setprio {args.cprio}")
common2()
if args.cwarm:
    A("s_cmp_lg_u32 s38, 1\ns_cbranch_scc1 L_nocw")
    A("s_getpc_b64 s[92:93]\nL_pc:\ns_sub_u32 s92, s92, L_pc-" + KN + "\ns_subb_u32 s93, s93, 0")
    A(f"s_mul_i32 s94, s41, {args.cwarm}\nv_min_u32 v192, {args.cwarm-1}, v1\nv_add_u32 v192, s94, v192\nv_lshlrev_b32 v192, 7, v192\nv_min_u32 v192, L_codeend-{KN}-4, v192")
    A("global_load_dword v254, v192, s[92:93]")
    A("L_nocw:")
A("s_mov_b32 s59, s40")
A("s_and_b32 s40, s38, 1\ns_lshr_b32 s41, s38, 1")
VX = 2; VW = 6; VH = 12; FR = 16; ACC = 96; T = 192; VST = 15
PF, PP, PH, PT, PL, PO = 208, 209, 210, 212, 214, 215
A(f"v_and_b32 v{T}, 15, v1")
A(f"s_lshl_b32 s42, s40, 6\nv_add_u32 v{T}, s42, v{T}\nv_lshlrev_b32 v{T}, 7, v{T}")
A(f"v_lshrrev_b32 v{T+1}, 4, v1\nv_bfe_u32 v{T+2}, v1, 1, 3\nv_xor_b32 v{T+1}, v{T+1}, v{T+2}")
for ks in range(2):
    A(f"v_xor_b32 v{T+2}, {4*ks}, v{T+1}\nv_lshlrev_b32 v{T+2}, 4, v{T+2}\nv_add_u32 v{VX+ks}, v{T}, v{T+2}\nv_add_u32 v{VX+2+ks}, {2*STG}, v{VX+ks}")
A(f"v_bfe_u32 v{T}, v1, 4, 1\nv_lshrrev_b32 v{T+1}, 4, v1\nv_bfe_u32 v{T+2}, v1, 2, 2\nv_and_b32 v{T+3}, 3, v1")
A(f"v_lshlrev_b32 v{T+1}, 3, v{T+1}\nv_add_u32 v{T+1}, v{T+1}, v{T+2}\nv_mul_u32_u24 v{T+1}, 192, v{T+1}")
A(f"v_lshlrev_b32 v{T+3}, 3, v{T+3}\nv_add_u32 v{T+1}, v{T+1}, v{T+3}\nv_add_u32 v{T+1}, 16384, v{T+1}")
A("s_mul_i32 s42, s41, 3")
for t in range(3):
    A(f"s_add_u32 s43, s42, {t}\nv_xor_b32 v{T+2}, s43, v{T}\nv_lshlrev_b32 v{T+2}, 5, v{T+2}\nv_add_u32 v{VW+t}, v{T+1}, v{T+2}\nv_add_u32 v{VW+3+t}, {2*STG}, v{VW+t}")
A(f"v_lshrrev_b32 v{T}, 5, v1\nv_mul_u32_u24 v{T}, 49152, v{T}\nv_and_b32 v{T+1}, 31, v1\nv_lshlrev_b32 v{T+1}, 4, v{T+1}\nv_add_u32 v{VH}, v{T}, v{T+1}")
A("s_lshl_b32 s44, s60, 3\ns_lshl_b32 s45, s40, 2\ns_add_u32 s44, s44, s45\ns_mul_i32 s44, s44, 49152")
A("s_lshr_b32 s45, s61, 3\ns_mul_i32 s45, s45, 24\ns_and_b32 s46, s61, 7\ns_add_u32 s45, s45, s46\ns_lshl_b32 s45, s45, 10\ns_add_u32 s44, s44, s45\ns_lshl_b32 s45, s41, 9\ns_add_u32 s44, s44, s45")
for t in range(3):
    for mp in range(2):
        A(f"s_add_u32 s{76+2*t+mp}, s44, {8192*t + 98304*mp}")
A("v_mov_b32 v13, 0")
A("s_mov_b32 s82, 0xbfb8aa3b\ns_mov_b32 s83, 0xbfb8aa3b\ns_mov_b32 s84, 1.0\ns_mov_b32 s85, 1.0")
A("s_waitcnt lgkmcnt(0)")
srd(72, 14, 15, 256)
A("s_or_b32 s46, s2, s38\ns_cmp_lg_u32 s46, 0\ns_cbranch_scc1 L_nononce")
A("s_memrealtime s[46:47]\ns_waitcnt lgkmcnt(0)\ns_lshl_b32 s46, s46, 3\ns_or_b32 s46, s46, 4\nv_mov_b32 v14, s46")
A("buffer_store_dword v14, v13, s[72:75], 0 offen sc1")
A("L_nononce:")
srd(32, 36, 37, 0x10000000)
srd(68, 12, 13, 2621440)
srd(28, 10, 11, 1966080)
if STAMPS: A(f"v_mov_b32 v{VST}, 0")
stamp(0, VST)
A("s_lshl_b32 s46, s60, 1\ns_add_u32 s46, s46, s40\ns_lshl_b32 s46, s46, 5\ns_lshl_b32 s47, s61, 1\ns_add_u32 s46, s46, s47\ns_add_u32 s46, s46, s41")
A(f"s_lshl_b32 s46, s46, 9\ns_add_u32 s46, s46, {FLAG_OFF}\nv_and_b32 v{PF}, 31, v1\nv_lshlrev_b32 v{PF}, 2, v{PF}\nv_add_u32 v{PF}, s46, v{PF}")
if args.warm:
    A(f"v_lshlrev_b32 v{T}, 3, v1\nv_add_u32 v{T}, s46, v{T}\nv_mov_b32 v{T+2}, 0\nv_mov_b32 v{T+3}, 0")
    A(f"buffer_store_dwordx2 v[{T+2}:{T+3}], v{T}, s[32:35], 0 offen sc1")
A(f"s_lshl_b32 s46, s62, 14\ns_lshl_b32 s47, s41, 13\ns_add_u32 s46, s46, s47\ns_add_u32 s46, s46, {FLAG_OFF}")
A(f"v_and_b32 v{PP}, 15, v1\nv_lshlrev_b32 v{PP}, 9, v{PP}\nv_add_u32 v{PP}, s46, v{PP}")
A(f"v_lshlrev_b32 v{PL}, 4, v1")
A("s_lshl_b32 s46, s62, 2\ns_lshl_b32 s47, s40, 1\ns_add_u32 s46, s46, s47\ns_mul_i32 s46, s46, 48\ns_mul_i32 s47, s41, 24\ns_add_u32 s46, s46, s47\ns_lshl_b32 s46, s46, 10")
if args.tail2:
    A(f"s_mul_i32 s47, s41, 49152\ns_add_u32 s47, s47, s46\nv_add_u32 v{PH+1}, s47, v{PL}\ns_xor_b32 s47, s41, 1\ns_mul_i32 s47, s47, 49152\ns_add_u32 s47, s47, s46\nv_add_u32 v{PH}, s47, v{PL}")
else:
    A(f"v_add_u32 v{PH}, s46, v{PL}\nv_add_u32 v{PH+1}, 49152, v{PH}")
A(f"v_lshrrev_b32 v{T}, 5, v1\nv_lshlrev_b32 v{T}, 4, v{T}\nv_bfe_u32 v{T+1}, v1, 4, 1\nv_lshlrev_b32 v{T+1}, 2, v{T+1}\nv_add_u32 v{T}, v{T}, v{T+1}")
A(f"v_bfe_u32 v{T+1}, v1, 2, 2\nv_add_u32 v{T}, v{T}, v{T+1}\nv_mul_u32_u24 v{T}, 160, v{T}\nv_and_b32 v{T+1}, 3, v1\nv_lshlrev_b32 v{T+1}, 3, v{T+1}\nv_add_u32 v{T}, v{T}, v{T+1}")
A(f"s_mul_i32 s46, s41, 20480\nv_add_u32 v{PT}, s46, v{T}\nv_add_u32 v{PT+1}, {2*STG}, v{PT}")
A(f"v_and_b32 v{PO}, 15, v1\ns_lshl_b32 s46, s62, 6\ns_lshl_b32 s47, s40, 5\ns_add_u32 s46, s46, s47\ns_lshl_b32 s47, s41, 4\ns_add_u32 s46, s46, s47\nv_add_u32 v{PO}, s46, v{PO}\nv_mul_u32_u24 v{PO}, 1280, v{PO}")
A(f"v_lshrrev_b32 v{T}, 4, v1\nv_lshlrev_b32 v{T}, 3, v{T}\nv_add_u32 v{PO}, v{PO}, v{T}\ns_mul_i32 s46, s63, 160\nv_add_u32 v{PO}, s46, v{PO}")
NE = args.cpf
if args.cpf == 3:
    A("s_mul_i32 s46, s67, 12\ns_mul_i32 s47, s38, 3\ns_add_u32 s46, s46, s47")
    A("s_mul_i32 s47, s67, 6\ns_add_u32 s47, s47, 96\ns_lshl_b32 s48, s38, 1\ns_add_u32 s47, s47, s48")
    A("s_cmp_lt_u32 s38, 3\ns_cselect_b32 s54, 2, 0\ns_cmp_lt_u32 s67, 16\ns_cselect_b32 s48, s46, s47\ns_cselect_b32 s54, 3, s54")
    A("s_cmp_lt_u32 s67, 32\ns_cselect_b32 s54, s54, 0\ns_cselect_b32 s48, s48, 0")
else:
    A("s_lshl_b32 s48, s67, 4\ns_lshl_b32 s47, s38, 2\ns_add_u32 s48, s48, s47\ns_cmp_lt_u32 s67, 32\ns_cselect_b32 s54, 4, 0\ns_cselect_b32 s48, s48, 0")
A("s_lshl_b32 s46, s48, 6\ns_mul_i32 s49, s59, 160\ns_mov_b32 s50, 52429")
for e in range(NE):
    A(f"v_add_u32 v{T}, s46, v1")
    if e: A(f"v_add_u32 v{T}, {64*e}, v{T}")
    A(f"v_mul_lo_u32 v{T+1}, v{T}, s50\nv_lshrrev_b32 v{T+1}, 19, v{T+1}")
    A(f"v_mul_u32_u24 v{T+2}, 10, v{T+1}\nv_sub_u32 v{T+2}, v{T}, v{T+2}\nv_lshlrev_b32 v{T+2}, 4, v{T+2}")
    A(f"v_lshrrev_b32 v{T+3}, 5, v{T+1}\nv_subrev_u32 v{T+4}, 24, v{T+3}\nv_cmp_gt_u32 vcc, 24, v{T+3}\nv_mov_b32 v{T+5}, 768\ns_nop 0")
    A(f"v_cndmask_b32 v{T+3}, v{T+4}, v{T+3}, vcc\nv_cndmask_b32 v{T+5}, v{T+5}, v13, vcc")
    A(f"v_and_b32 v{T+4}, 7, v{T+3}\nv_mul_u32_u24 v{T+4}, 96, v{T+4}\nv_add_u32 v{T+5}, v{T+5}, v{T+4}")
    A(f"v_lshrrev_b32 v{T+4}, 3, v{T+3}\nv_lshlrev_b32 v{T+4}, 4, v{T+4}\nv_add_u32 v{T+5}, v{T+5}, v{T+4}")
    A(f"v_bfe_u32 v{T+4}, v{T+1}, 4, 1\nv_mul_u32_u24 v{T+4}, 48, v{T+4}\nv_add_u32 v{T+5}, v{T+5}, v{T+4}")
    A(f"v_and_b32 v{T+4}, 15, v{T+1}\nv_add_u32 v{T+5}, v{T+5}, v{T+4}")
    A(f"v_mul_u32_u24 v{T+5}, 1280, v{T+5}\nv_add_u32 v{249+e}, v{T+5}, v{T+2}")
A(f"s_mul_i32 s50, s59, 240\ns_add_u32 s50, s50, s48\ns_lshl_b32 s50, s50, 10\ns_add_u32 s50, s50, {WDP_OFF}")

def xreg(s, mi): return FR + 40*(s & 1) + 4*mi
def wreg(s, t, u): return FR + 40*(s & 1) + 16 + 4*(2*t + u)
def reads(s):
    c, ks = s >> 1, s & 1
    st = c % 3
    hi = 1 if st >= 2 else 0
    so = (st & 1) * STG
    r = []
    def rw(t, u):
        for rr in range(2):
            d = wreg(s, t, u) + 2*rr
            r.append(f"ds_read_b64_tr_b16 v[{d}:{d+1}], v{VW+3*hi+t} offset:{so + 6144*ks + 768*rr + 12288*u}")
    def rx(mi):
        d = xreg(s, mi)
        r.append(f"ds_read_b128 v[{d}:{d+3}], v{VX+2*hi+ks} offset:{so + 2048*mi}")
    rw(0, 0); rx(0); rx(1); rx(2); rx(3); rw(0, 1); rw(1, 0); rw(1, 1); rw(2, 0); rw(2, 1)
    return r
def mfma(s, mi, t, u):
    a = ACC + 4*((mi*3 + t)*2 + u)
    wa, xa = wreg(s, t, u), xreg(s, mi)
    c = "0" if s == 0 else f"v[{a}:{a+3}]"
    return f"v_mfma_f32_16x16x32_bf16 v[{a}:{a+3}], v[{wa}:{wa+3}], v[{xa}:{xa+3}], {c}"
def mfmas(s):
    if args.chain:
        import re
        base = [mfma(s, mi, t, u) for t in range(3) for u in range(2) for mi in range(4)]
        if args.chain >= 2:
            order = []
            for k in range(12):
                order.append(base[k]); order.append(base[12 + (k + 1) % 12])
            base = order
        r = []
        for k, x in enumerate(base):
            p = base[k & ~(3 if args.chain == 3 else 7 if args.chain == 4 else 1)]
            d = re.match(r"v_mfma_f32_16x16x32_bf16 (v\[\d+:\d+\])", p).group(1)
            if s & 1:
                lo = int(d[2:d.index(":")]); lo = ACC + ((lo - ACC + 48) % 96); d = f"v[{lo}:{lo+3}]"
            parts = x.split(", ")
            r.append(f"v_mfma_f32_16x16x32_bf16 {d}, {parts[1]}, {parts[2]}, " + ("0" if s < 2 and base[k] is p else d))
        return r
    if args.snake == 1:
        return [mfma(s, (mi if u == 0 else 3 - mi), t, u) for t in range(3) for u in range(2) for mi in range(4)]
    if args.snake == 2:
        tus = [(t, u) for t in range(3) for u in range(2)]
        return [mfma(s, mi, *(tus[k] if mi % 2 == 0 else tus[5 - k])) for mi in range(4) for k in range(6)]
    return [mfma(s, mi, t, u) for t in range(3) for u in range(2) for mi in range(4)]
def copy_ops(s):
    if s == CPS[0]:
        for e in range(NE):
            A(f"s_cmp_le_u32 s54, {e}\ns_cbranch_scc1 L_nocp1")
            A(f"buffer_load_dwordx4 v[{224+4*e}:{227+4*e}], v{249+e}, s[28:31], s49 offen")
        A("L_nocp1:")
    if s == CPS[1]:
        A("s_waitcnt vmcnt(0)")
        for e in range(NE):
            A(f"s_cmp_le_u32 s54, {e}\ns_cbranch_scc1 L_nocp2")
            A(f"buffer_store_dwordx4 v[{224+4*e}:{227+4*e}], v{PL}, s[32:35], s50 offen offset:{1024*e} sc1")
        A("L_nocp2:")
if args.ch1:
    X1Q = [192, 196, 200, 204, 216, 220, 240, 244]
    def xreg(s, mi):
        c, ks = s >> 1, s & 1
        return (64 + 16*ks + 4*mi) if (c & 1) else X1Q[4*ks + mi]
    def wreg(s, t, u): return 16 + 8*(2*t + u) + 4*(s & 1)
    def rd_w(c, g):
        t, u = g >> 1, g & 1
        st = c % 3; hi = 1 if st >= 2 else 0; so = (st & 1) * STG
        return [(("w", c, g), f"ds_read_b64_tr_b16 v[{wreg(2*c+ks,t,u)+2*rr}:{wreg(2*c+ks,t,u)+2*rr+1}], v{VW+3*hi+t} offset:{so + 6144*ks + 768*rr + 12288*u}") for ks in range(2) for rr in range(2)]
    def rd_x(c):
        st = c % 3; hi = 1 if st >= 2 else 0; so = (st & 1) * STG
        return [(("x", c), f"ds_read_b128 v[{xreg(2*c+ks,mi)}:{xreg(2*c+ks,mi)+3}], v{VX+2*hi+ks} offset:{so + 2048*mi}") for mi in range(4) for ks in range(2)]
    lq = []
    def lissue(r):
        A(r[1]); lq.append(r[0])
    def lwait(tags):
        last = max([i for i, t in enumerate(lq) if t in tags] + [-1])
        if last >= 0:
            A(f"s_waitcnt lgkmcnt({min(15, len(lq) - 1 - last)})")
            del lq[:last + 1]
    A("s_barrier")
    stamp(1, VST)
    for r in rd_w(0, 0) + rd_x(0) + rd_w(0, 1) + rd_w(0, 2): lissue(r)
    pend = rd_w(0, 3) + rd_w(0, 4) + rd_w(0, 5)
    for c in range(9):
        for g in range(6):
            t, u = g >> 1, g & 1
            if g == 3:
                assert not pend
                if 2*c + 1 == CPS[2]: A("s_waitcnt vmcnt(0)")
                A("s_waitcnt lgkmcnt(0)"); del lq[:]
                A("s_barrier")
                pend = rd_w(c + 1, 0) + rd_x(c + 1) + rd_w(c + 1, 1) + rd_w(c + 1, 2)
            lwait({("w", c, g), ("x", c)})
            for k in range(8):
                mi, ks = k >> 1, k & 1
                A(mfma(2*c + ks, mi, t, u))
                if pend: lissue(pend.pop(0))
                if g == 2 and k == 0: copy_ops(2*c)
                if g == 5 and k == 0: copy_ops(2*c + 1)
        assert not pend
        pend = rd_w(c + 1, 3) + rd_w(c + 1, 4) + rd_w(c + 1, 5)
else:
    A("s_barrier")
    stamp(1, VST)
    for r in reads(0):
        A(r)
    for s in range(18):
        m = mfmas(s)
        nx = reads(s + 1)
        A("s_waitcnt lgkmcnt(0)")
        i0 = 0
        if s & 1:
            for x in m[:4]: A(x)
            if s == CPS[2]: A("s_waitcnt vmcnt(0)")
            if args.cbar == 1 and s in (13, 17): stamp(11 if s == 13 else 13, VST)
            A("s_barrier")
            if args.cbar == 1 and s in (13, 17): stamp(12 if s == 13 else 14, VST)
            if args.cpos < 0: copy_ops(s)
            if s == 17:
                A("s_load_dword s65, s[14:15], 0")
            i0 = 4
        k = 0
        for i in range(i0, 24):
            A(m[i])
            if k < 16:
                A(nx[k]); k += 1
            if i == args.cpos: copy_ops(s)
    for r in reads(19):
        A(r)
units = [(t, mp) for t in range(3) for mp in range(2)]
def epi(k):
    t, mp = units[k]
    o = 224 + 4*k
    TT = T + 8*(k & 1)
    e = []
    ga = [ACC + 4*(((2*mp + (j >> 2))*3 + t)*2 + 0) + (j & 3) for j in range(8)]
    ua = [ACC + 4*(((2*mp + (j >> 2))*3 + t)*2 + 1) + (j & 3) for j in range(8)]
    for j in range(0, 8, 2): e.append(f"v_pk_mul_f32 v[{TT+j}:{TT+j+1}], v[{ga[j]}:{ga[j]+1}], s[82:83]")
    for j in range(8): e.append(f"v_exp_f32 v{TT+j}, v{TT+j}")
    for j in range(0, 8, 2): e.append(f"v_pk_add_f32 v[{TT+j}:{TT+j+1}], v[{TT+j}:{TT+j+1}], s[84:85]")
    for j in range(8): e.append(f"v_rcp_f32 v{TT+j}, v{TT+j}")
    for j in range(0, 8, 2): e.append(f"v_pk_mul_f32 v[{TT+j}:{TT+j+1}], v[{TT+j}:{TT+j+1}], v[{ua[j]}:{ua[j]+1}]")
    for j in range(4): e.append(f"v_cvt_pk_bf16_f32 v{o+j}, v{TT+2*j}, v{TT+2*j+1}")
    e.append("s_nop 1")
    e.append(f"v_permlane32_swap_b32 v{o}, v{o+2}")
    e.append(f"v_permlane32_swap_b32 v{o+1}, v{o+3}")
    e.append(f"buffer_store_dwordx4 v[{o}:{o+3}], v{VH}, s[32:35], s{76+2*t+mp} offen sc1")
    return e
if args.ch1:
    mstream = [mfma(s, 2*mp + mm, t, u) for (t, mp) in units for u in range(2) for mm in range(2) for s in (18, 19)]
    lwait({("w", 9, 0), ("w", 9, 1), ("x", 9)})
    for x in mstream[:8]:
        A(x)
        for _ in range(2):
            if pend: lissue(pend.pop(0))
    A("s_load_dword s65, s[14:15], 0")
    for x in mstream[8:12]: A(x)
    A("s_waitcnt lgkmcnt(0)")
    A("s_barrier")
    stamp(2, VST)
else:
    A("s_waitcnt lgkmcnt(0)")
    A("s_barrier")
    stamp(2, VST)
    mstream = [mfma(s, 2*mp + mm, t, u) for (t, mp) in units for s in (18, 19) for u in range(2) for mm in range(2)]
    for x in mstream[:8]:
        A(x)
A("s_mov_b32 s66, 0\ns_cmp_lg_u32 s65, 0\ns_cbranch_scc1 L_havenonce")
A("L_nloop:")
A("buffer_load_dword v14, v13, s[72:75], 0 offen sc1\ns_waitcnt vmcnt(0)\nv_readfirstlane_b32 s65, v14\ns_add_u32 s66, s66, 1")
A(f"s_cmp_gt_u32 s66, {SPIN}\ns_cbranch_scc1 L_havenonce\ns_cmp_eq_u32 s65, 0\ns_cbranch_scc1 L_nloop")
A("L_havenonce:")
A("s_mov_b32 s86, 0\ns_mov_b32 s87, 128\ns_mov_b32 s88, 256")
A("v_mov_b32 v2, s65")
for x in mstream[(12 if args.ch1 else 8):16]:
    A(x)
rem = mstream[16:]
cv = []
def cwait(tag):
    last = max(i for i, t in enumerate(cv) if t == tag)
    return len(cv) - 1 - last
def flag(stage):
    A(f"s_waitcnt vmcnt({cwait(('st', 2*stage + 1))})")
    A(f"buffer_store_dword v2, v{PF}, s[32:35], s{86+stage} offen sc1"); cv.append(("fl", stage))
for k in range(6):
    e = epi(k)
    ms = rem[8*k:8*k+8]
    pos = [1, 4, 7, 10, 13, 16, 19, 22]
    for i, x in enumerate(e):
        if ms and i in pos:
            A(ms[pos.index(i)])
        A(x)
    cv.append(("st", k))
    if k == args.f0at: flag(0)
stamp(3, VST)
flag(1)
A("s_barrier")
WD = 16
HRL = [176, 184, 192, 200, 6][:args.nh]
NH = len(HRL)
ACC2 = 216
def wdreg(i, n): return WD + 20*(i % 8) + 4*n
def wd_reads(i):
    jj, s = i >> 2, i & 3
    sl = WSLOT[jj]
    va = PT + 1 if sl >= 2 else PT
    so = (sl & 1) * STG
    r = []
    for n in range(5):
        for rr in range(2):
            d = wdreg(i, n) + 2*rr
            r.append(f"ds_read_b64_tr_b16 v[{d}:{d+1}], v{va} offset:{so + 5120*s + 32*n + 1280*rr}")
    return r
for i in range(8):
    if (args.p0early == 2 and i == 0) or (args.p0early == 3 and i == 4):
        flag(2)
        A(POLL(86)); cv.append(("p", 0))
    for r in wd_reads(i): A(r)
if args.p0early < 2: flag(2)
stamp(4, VST)
if args.p0early == 1: A(POLL(86)); cv.append(("p", 0))
A("s_waitcnt lgkmcnt(0)")
A("s_barrier")
stamp(5, VST)
def check(stage):
    A("s_mov_b32 s66, 0")
    A(f"L_chk{stage}:")
    A(f"v_cmp_ne_u32 vcc, s65, v5\ns_add_u32 s66, s66, 1\ns_nop 0")
    A(f"s_cmp_eq_u64 vcc, 0\ns_cbranch_scc1 L_go{stage}\ns_cmp_gt_u32 s66, {SPIN}\ns_cbranch_scc1 L_go{stage}\ns_sleep {args.sleep}")
    A(POLL(86+stage) + f"\ns_waitcnt vmcnt(0)\ns_branch L_chk{stage}")
    A(f"L_go{stage}:")
if not args.p0early: A(POLL(86)); cv.append(("p", 0))
A("s_waitcnt vmcnt(0)")
check(0)
stamp(6, VST)
def hreg(i, mm): return HRL[i % NH] + 4*mm
def h_loads(i):
    jj, s = i >> 2, i & 3
    if args.rot4:
        if i % 2 == 0: A(f"s_add_u32 s58, s89, {(i>>1)&3}\ns_and_b32 s58, s58, 3\ns_lshl_b32 s58, s58, 11\ns_add_u32 s58, s58, {(i>>3)*8192}")
        s = i & 1
    elif s == 0: A(f"s_xor_b32 s58, s89, {jj}\ns_lshl_b32 s58, s58, 12")
    for mm in range(2):
        A(f"buffer_load_dwordx4 v[{hreg(i,mm)}:{hreg(i,mm)+3}], v{PH+mm}, s[32:35], s58 offen offset:{1024*s} sc1"); cv.append(("h", i))
def poll(stage):
    A(POLL(86+stage)); cv.append(("p", len(cv)))
    return cv[-1]
for i in range(NH):
    h_loads(i)
if args.p1at < 0: ptag = poll(1)
if args.p1dual:
    A(f"buffer_load_dword v14, v{PP}, s[32:35], s87 offen sc1"); cv.append(("pa", 0))
if args.tail2:
    def p2mfma(i, n, mm):
        a = ACC2 + 4*(5*mm + n)
        c = "0" if i == 0 else f"v[{a}:{a+3}]"
        return f"v_mfma_f32_16x16x32_bf16 v[{a}:{a+3}], v[{wdreg(i,n)}:{wdreg(i,n)+3}], v[{hreg(i,mm)}:{hreg(i,mm)+3}], {c}"
    OF = (" " + args.outflag) if args.outflag else ""
    if args.ch2:
        free = []
        WQ = {(i, n): WD + 20*i + 4*n for i in range(8) for n in range(5)}
        HQ = {(i, mm): HRL[i] + 4*mm for i in range(NH) for mm in range(2)}
        def wdreg(i, n): return WQ[(i, n)]
        def hreg(i, mm): return HQ[(i, mm)]
        nxt_h = NH
        for p in range(12):
            i0, i1 = 2*p, 2*p + 1
            if i0 == 4*NCERT - 2:
                A("s_barrier")
            last = (p == 11)
            A(f"s_waitcnt vmcnt({cwait(('h', i1))})" + (" lgkmcnt(0)" if p >= 4 else ""))
            if p == 0: stamp(7, VST)
            if i0 <= args.p1at <= i1: ptag = poll(1)
            rd = []
            if 4 <= p + 1 < 12:
                for i in (i0 + 2, i1 + 2):
                    for n in range(5): WQ[(i, n)] = free.pop(0)
                    rd += wd_reads(i)
            if last:
                A("s_barrier")
                M = [p2mfma(i, n, 0) for n in range(5) for i in (22, 23)] + [p2mfma(i, n, 1) for n in range(5) for i in (22, 23)]
                for k, x in enumerate(M):
                    A(x)
                    if k in (10, 12, 14, 16, 18):
                        n = (k - 10) // 2
                        A(f"ds_write_b128 v3, v[{ACC2+4*n}:{ACC2+4*n+3}] offset:{1024*n}")
                break
            k = 0
            for n in range(5):
                for mm in range(2):
                    for i in (i0, i1):
                        A(p2mfma(i, n, mm))
                        for _ in range(2 if k < 8 else 1):
                            if rd: A(rd.pop(0))
                        k += 1
            for i in (i0, i1):
                free += [WQ[(i, n)] for n in range(5)] + [HQ[(i, mm)] for mm in range(2)]
            reserve = 10 if 4 <= p + 2 < 12 else 0
            while nxt_h < 24 and nxt_h < i1 + 1 + args.hla and len(free) - 2 >= reserve:
                if nxt_h % 8 == 0:
                    A(f"s_waitcnt vmcnt({cwait(ptag)})")
                    check(nxt_h // 8)
                HQ[(nxt_h, 0)] = free.pop(); HQ[(nxt_h, 1)] = free.pop()
                h_loads(nxt_h)
                if nxt_h == args.p2at: ptag = poll(2)
                nxt_h += 1
            if p == 10:
                A(f"s_mul_i32 s46, s38, 5120\nv_add_u32 v2, s46, v{PL}")
                A(f"s_xor_b32 s47, s38, 2\ns_mul_i32 s47, s47, 5120\nv_add_u32 v3, s47, v{PL}")
                A(f"v_bfe_u32 v4, v1, 4, 1\nv_mul_u32_u24 v4, 24, v4\nv_add_u32 v4, v4, v{PO}")
    else:
        for i in range(22):
            if i == 4*NCERT - 2:
                A("s_barrier")
            lg = " lgkmcnt(10)" if 8 <= i else ""
            A(f"s_waitcnt vmcnt({cwait(('h', i))}){lg}")
            if i == 0: stamp(7, VST)
            if args.cbar == 2 and i in (4, 8, 12, 16, 20): stamp(10 + i//4, VST)
            if i == args.p1at: ptag = poll(1)
            rd = wd_reads(i + 2) if 8 <= i + 2 < 24 else []
            k = 0
            for n in range(5):
                for mm in range(2):
                    A(p2mfma(i, n, mm))
                    if k < len(rd):
                        A(rd[k]); k += 1
            j = i + NH
            if j < 24:
                if j % 8 == 0:
                    if args.p1dual and j == 8:
                        A(f"s_waitcnt vmcnt({cwait(('pa', 0))})\nv_cmp_ne_u32 vcc, s65, v14\ns_nop 1\ns_cmp_eq_u64 vcc, 0\ns_cbranch_scc1 L_go1")
                    A(f"s_waitcnt vmcnt({cwait(ptag)})")
                    check(j // 8)
                h_loads(j)
                if j == args.p2at:
                    ptag = poll(2)
            if i == 20:
                A(f"s_mul_i32 s46, s38, 5120\nv_add_u32 v2, s46, v{PL}")
                A(f"s_xor_b32 s47, s38, 2\ns_mul_i32 s47, s47, 5120\nv_add_u32 v3, s47, v{PL}")
                if args.wide:
                    A(f"v_bfe_u32 v4, v1, 4, 1\nv_mul_u32_u24 v4, 24, v4\nv_add_u32 v4, v4, v{PO}")
        A(f"s_waitcnt vmcnt({cwait(('h', 22))}) lgkmcnt(10)")
        for n in range(5): A(p2mfma(22, n, 0))
        A("s_waitcnt vmcnt(0) lgkmcnt(0)")
        A("s_barrier")
        M = [p2mfma(23, n, 0) for n in range(5)] + [p2mfma(22, n, 1) for n in range(5)] + [p2mfma(23, n, 1) for n in range(5)]
        for k, x in enumerate(M):
            A(x)
            if 9 <= k < 14:
                n = k - 9
                A(f"ds_write_b128 v3, v[{ACC2+4*n}:{ACC2+4*n+3}] offset:{1024*n}")
    stamp(8, VST)
    A("s_waitcnt lgkmcnt(0)\ns_barrier")
    for n in range(5):
        A(f"ds_read_b128 v[{16+4*n}:{19+4*n}], v2 offset:{1024*n}")
    for n in range(5):
        a = ACC2 + 4*(5 + n)
        A(f"s_waitcnt lgkmcnt({4-n})")
        for r in range(4):
            A(f"v_add_f32 v{16+4*n+r}, v{16+4*n+r}, v{a+r}")
        A(f"v_cvt_pk_bf16_f32 v{40+2*n}, v{16+4*n}, v{17+4*n}\nv_cvt_pk_bf16_f32 v{41+2*n}, v{18+4*n}, v{19+4*n}")
        if args.wide and n < 4:
            if n & 1:
                o = 40 + 2*(n - 1)
                A(f"s_nop 1\nv_permlane16_swap_b32 v{o}, v{o+2}\nv_permlane16_swap_b32 v{o+1}, v{o+3}")
                A(f"buffer_store_dwordx4 v[{o}:{o+3}], v4, s[68:71], 0 offen offset:{32*(n-1)}{OF}")
        else:
            A(f"buffer_store_dwordx2 v[{40+2*n}:{41+2*n}], v{PO}, s[68:71], 0 offen offset:{32*n}{OF}")
else:
    for i in range(24):
        if i == 4*NCERT - 2:
            A("s_barrier")
        lg = " lgkmcnt(10)" if 8 <= i < 23 else (" lgkmcnt(0)" if i == 23 else "")
        A(f"s_waitcnt vmcnt({cwait(('h', i))}){lg}")
        if i == 0: stamp(7, VST)
        if i == args.p1at: ptag = poll(1)
        if i == 23:
            A("s_barrier")
        rd = wd_reads(i + 2) if 8 <= i + 2 < 24 else []
        k = 0
        for n in range(5):
            for mm in range(2):
                a = ACC2 + 4*(5*mm + n)
                c = "0" if i == 0 else f"v[{a}:{a+3}]"
                A(f"v_mfma_f32_16x16x32_bf16 v[{a}:{a+3}], v[{wdreg(i,n)}:{wdreg(i,n)+3}], v[{hreg(i,mm)}:{hreg(i,mm)+3}], {c}")
                if k < len(rd):
                    A(rd[k]); k += 1
        j = i + NH
        if j < 24:
            if j % 8 == 0:
                A(f"s_waitcnt vmcnt({cwait(ptag)})")
                check(j // 8)
            h_loads(j)
            if j == 16 - NH:
                ptag = poll(2)
    stamp(8, VST)
    A(f"s_mul_i32 s46, s38, 5120\nv_add_u32 v10, s46, v{PL}")
    A(f"s_xor_b32 s47, s38, 2\ns_mul_i32 s47, s47, 5120\nv_add_u32 v11, s47, v{PL}")
    A("s_nop 4")
    A("s_cmp_eq_u32 s41, 0\ns_cbranch_scc0 L_kh1")
    OF = (" " + args.outflag) if args.outflag else ""
    for kh in range(2):
        if kh == 1: A("L_kh1:")
        snd = 1 - kh
        for n in range(5):
            a = ACC2 + 4*(5*snd + n)
            A(f"ds_write_b128 v11, v[{a}:{a+3}] offset:{1024*n}")
        A("s_waitcnt lgkmcnt(0)\ns_barrier")
        for n in range(5):
            A(f"ds_read_b128 v[{16+4*n}:{19+4*n}], v10 offset:{1024*n}")
        for n in range(5):
            a = ACC2 + 4*(5*kh + n)
            A(f"s_waitcnt lgkmcnt({4-n})")
            for r in range(4):
                A(f"v_add_f32 v{16+4*n+r}, v{16+4*n+r}, v{a+r}")
            A(f"v_cvt_pk_bf16_f32 v{40+2*n}, v{16+4*n}, v{17+4*n}\nv_cvt_pk_bf16_f32 v{41+2*n}, v{18+4*n}, v{19+4*n}")
            A(f"buffer_store_dwordx2 v[{40+2*n}:{41+2*n}], v{PO}, s[68:71], 0 offen offset:{32*n}{OF}")
        if kh == 0:
            A("s_branch L_fin")
A("L_fin:")
stamp(9, VST)
if STAMPS or PROBE:
    A("s_waitcnt vmcnt(0)")
stamp(10, VST)
if PROBE:
    A("s_memrealtime s[46:47]\ns_waitcnt lgkmcnt(0)\ns_sub_u32 s48, s94, s92\ns_min_u32 s48, s48, 10000\ns_add_u32 s48, s48, s46")
    A("L_pspin:\ns_memrealtime s[46:47]\ns_waitcnt lgkmcnt(0)\ns_sub_u32 s49, s48, s46\ns_cmp_gt_i32 s49, 0\ns_cbranch_scc1 L_pspin")
store_stamps(VST, 16, 0, "L_st0", 38, 0)
A("s_endpgm")
A("L_codeend:")

out.append('.section .rodata,"a"\n.p2align 6')
out.append(f""".amdhsa_kernel {KN}
  .amdhsa_next_free_vgpr 256
  .amdhsa_next_free_sgpr 100
  .amdhsa_accum_offset 256
  .amdhsa_group_segment_fixed_size 0
  .amdhsa_kernarg_size 56
  .amdhsa_user_sgpr_count 2
  .amdhsa_user_sgpr_kernarg_segment_ptr 1
  .amdhsa_system_sgpr_workgroup_id_x 1
.end_amdhsa_kernel""")
print("\n".join(out))
```

```python
import sys, argparse
ap = argparse.ArgumentParser()
ap.add_argument("--stamps", action="store_true")
ap.add_argument("--ser", type=int, default=0)
ap.add_argument("--thr", type=int, default=10)
ap.add_argument("--thr2", type=int, default=6)
ap.add_argument("--wdat", default="9:6,10:5")
ap.add_argument("--n11", type=int, default=40)
ap.add_argument("--chk", type=int, default=8)
ap.add_argument("--cps", default="4,6,9")
ap.add_argument("--sleep", type=int, default=4)
ap.add_argument("--f0at", type=int, default=4, help="F0 goes after this unit's store")
ap.add_argument("--nh", type=int, default=5)
ap.add_argument("--cpf", type=int, default=3, help="blocks per wave, fast WGs (3 -> medium WGs do the rest, 4 -> fast only (15 of 16))")
ap.add_argument("--outflag", default="")
ap.add_argument("--tail2", type=int, default=1)
ap.add_argument("--park", type=int, default=0, help="Wd chunks 4,5 parked in L registers")
ap.add_argument("--n12", type=int, default=0)
ap.add_argument("--ncert", type=int, default=0)
ap.add_argument("--hint", type=int, default=0, help="interleave h loads into the next step's MFMAs")
ap.add_argument("--p2map", default="8x1")
ap.add_argument("--ch1", type=int, default=1)
ap.add_argument("--ch2", type=int, default=0)
ap.add_argument("--hla", type=int, default=6, help="ch2: h loads outstanding beyond current pair (steps)")
ap.add_argument("--clk", type=int, default=0)
ap.add_argument("--chain", type=int, default=0, help="DIAGNOSTIC (wrong math): pairs of MFMAs on the same accumulator")
ap.add_argument("--swapr", type=int, default=0)
ap.add_argument("--p1dual", type=int, default=0)
ap.add_argument("--p2at", type=int, default=11, help="h-load index after which stage-2 poll is issued")
ap.add_argument("--rot4", type=int, default=0)
ap.add_argument("--mwarm", type=int, default=-1, help="barrier before which non-copy WGs touch Wd (MALL warm)")
ap.add_argument("--xfirst", type=int, default=0)
ap.add_argument("--wide", type=int, default=1)
ap.add_argument("--pro2", type=int, default=1)
ap.add_argument("--cwarm", type=int, default=0, help="lines of code each WG pulls into L2 at start")
ap.add_argument("--wsoff", type=int, default=0, help="MB offset of the used ws window")
ap.add_argument("--touch", type=int, default=0, help="scalar TLB pre-touch stride in KB (test)")
ap.add_argument("--touchat", type=int, default=-1)
ap.add_argument("--warm", type=int, default=0, help="producers pre-write their flag lines at start")
ap.add_argument("--pollmode", default="sc1")
ap.add_argument("--cbar", type=int, default=0, help="stamp C around barriers at steps 13,17 into 11..14")
ap.add_argument("--swp", type=int, default=0, help="pairwise chunk swap by parity in phase 2")
ap.add_argument("--lprio", type=int, default=0)
ap.add_argument("--cprio", type=int, default=0)
ap.add_argument("--cpos", type=int, default=16, help="mfma index inside the step after which copy ops are placed (-1: right after barrier)")
ap.add_argument("--snake", type=int, default=0)
ap.add_argument("--thr3", type=int, default=0, help="throttle for Wd ops after B12 (0: same as thr2)")
ap.add_argument("--probe", default="", help="i,j : C waves spin at the end for (t_j - t_i) [diagnostic]")
ap.add_argument("--p0early", type=int, default=0)
ap.add_argument("--p1at", type=int, default=0, help="step at whose start the stage-1 poll is issued (-1: with first loads)")
args = ap.parse_args()
STAMPS = args.stamps

out = []
def A(s):
    for l in s.split("\n"):
        out.append("    " + l if l and not l.endswith(":") and not l.startswith(".") and not l.startswith(";") else l)

HDR = open("standalone__glu_gated_glu__prompt.s.ref").read().split("\n")
for l in HDR[:8]:
    out.append(l)
KN = "standalone__glu_gated_glu__prompt_kernel"
out.append(f"; @launch grid=(256,1,1) block=(512,1,1) lds=163840")
A('.amdgcn_target "amdgcn-amd-amdhsa--gfx950"')
A(".text")

FLAG_OFF = 0x700000
WFLAG_OFF = 0x780000
WDP_OFF = 0x800000
STAMP_OFF = 192 << 20
STG = 40960
SPIN = 0x100000
CPS = [int(x) for x in args.cps.split(",")]

def srd(r, lo, hi, size):
    if r == 32 and args.wsoff:
        A(f"s_add_u32 s32, s36, {args.wsoff << 20}\ns_addc_u32 s33, s37, 0\ns_mov_b32 s34, {0x10000000 - (args.wsoff << 20)}\ns_mov_b32 s35, 0x20000")
        return
    A(f"s_mov_b32 s{r}, s{lo}\ns_mov_b32 s{r+1}, s{hi}\ns_mov_b32 s{r+2}, {size}\ns_mov_b32 s{r+3}, 0x20000")

PROBE = [int(x) for x in args.probe.split(",")] if args.probe else []
def POLL(sreg):
    if args.pollmode == "atomic":
        return f"v_mov_b32 v5, s65\ns_mov_b64 exec, 0xffff\nv_mov_b32 v5, 0\nbuffer_atomic_or v5, v209, s[32:35], s{sreg} offen sc0 sc1\ns_mov_b64 exec, -1"
    return f"buffer_load_dword v5, v209, s[32:35], s{sreg} offen {args.pollmode}"
def stamp(i, vreg):
    if PROBE and vreg == 15 and i in PROBE:
        r = 92 + 2*PROBE.index(i)
        A(f"s_memrealtime s[{r}:{r+1}]\ns_waitcnt lgkmcnt(0)")
    if STAMPS and args.clk:
        A(f"s_memrealtime s[90:91]\ns_memtime s[96:97]\ns_waitcnt lgkmcnt(0)\nv_writelane_b32 v{vreg}, s90, {2*i}\nv_writelane_b32 v{vreg}, s91, {2*i+1}\nv_writelane_b32 v{vreg}, s96, {32+2*i}\nv_writelane_b32 v{vreg}, s97, {33+2*i}")
    elif STAMPS:
        A(f"s_memrealtime s[90:91]\ns_waitcnt lgkmcnt(0)\nv_writelane_b32 v{vreg}, s90, {2*i}\nv_writelane_b32 v{vreg}, s91, {2*i+1}")

def store_stamps(vreg, vtmp, rec, label, wave_sreg, wavesel):
    if not STAMPS:
        return
    A(f"s_cmp_lg_u32 s{wave_sreg}, {wavesel}\ns_cbranch_scc1 {label}")
    A(f"s_lshl_b32 s90, s2, 7\ns_add_u32 s90, s90, {STAMP_OFF + rec*256*128}\nv_lshlrev_b32 v{vtmp}, 2, v1\nv_add_u32 v{vtmp}, s90, v{vtmp}")
    if args.clk:
        A(f"v_lshrrev_b32 v{vtmp+1}, 5, v1\nv_mul_u32_u24 v{vtmp+1}, {2*256*128 - 128}, v{vtmp+1}\nv_add_u32 v{vtmp}, v{vtmp}, v{vtmp+1}\nbuffer_store_dword v{vreg}, v{vtmp}, s[32:35], 0 offen")
    else:
        A(f"s_mov_b64 exec, 0xffffffff\nbuffer_store_dword v{vreg}, v{vtmp}, s[32:35], 0 offen")
    A(f"{label}:")

A(f".globl {KN}\n.p2align 8\n.type {KN},@function\n{KN}:")
if args.pro2:
    A("s_load_dwordx2 s[16:17], s[0:1], 0\ns_load_dwordx2 s[20:21], s[0:1], 8\ns_load_dwordx2 s[24:25], s[0:1], 16")
    A("s_load_dwordx2 s[10:11], s[0:1], 24")
else:
    A("s_load_dwordx8 s[4:11], s[0:1], 0")
A("s_load_dwordx4 s[12:15], s[0:1], 32")
A("s_load_dwordx2 s[36:37], s[0:1], 48")
A("s_cmp_ge_u32 s2, 256\ns_cbranch_scc1 L_end")
if PROBE and PROBE[0] == -1: A("s_memrealtime s[92:93]")
A("v_and_b32 v1, 63, v0\nv_lshrrev_b32 v2, 6, v0")
A("s_and_b32 s40, s2, 7\ns_lshr_b32 s41, s2, 3")
if args.swapr: A("v_xor_b32 v2, 4, v2\ns_nop 0")
A("v_readfirstlane_b32 s38, v2")
A("s_and_b32 s60, s40, 1\ns_lshl_b32 s60, s60, 3\ns_and_b32 s42, s41, 7\ns_add_u32 s60, s60, s42")
A("s_lshr_b32 s61, s40, 1\ns_lshl_b32 s61, s61, 2\ns_lshr_b32 s43, s41, 3\ns_add_u32 s61, s61, s43")
A("s_lshl_b32 s64, s61, 1\ns_add_u32 s64, s64, s60\ns_and_b32 s64, s64, 7")
A("s_cmp_lt_u32 s38, 4\ns_cbranch_scc1 L_compute")

def common2():
    if args.p2map == "4x2":
        A("s_and_b32 s62, s40, 3\ns_lshl_b32 s62, s62, 3\ns_add_u32 s62, s62, s42")
        A("s_lshr_b32 s63, s40, 2\ns_lshl_b32 s63, s63, 2\ns_add_u32 s63, s63, s43")
    else:
        A("s_lshl_b32 s62, s40, 2\ns_add_u32 s62, s62, s43\ns_mov_b32 s63, s42")
    A("s_lshr_b32 s44, s64, 2\ns_lshl_b32 s45, s43, 1\ns_add_u32 s45, s45, s44")
    A("s_lshl_b32 s46, s45, 1\ns_and_b32 s47, s64, 1\ns_add_u32 s46, s46, s47\ns_add_u32 s45, s45, 16")
    A("s_bitcmp1_b32 s64, 1\ns_cselect_b32 s67, s45, s46")
    A("s_and_b32 s47, s64, 3\ns_cmp_eq_u32 s47, 3\ns_cselect_b32 s67, 255, s67")
    if args.cpf == 4:
        A("s_cmp_ge_u32 s67, 15\ns_cselect_b32 s67, 255, s67")
    if args.rot4 == 1: A("s_add_u32 s89, s62, s63\ns_and_b32 s89, s89, 3")
    elif args.rot4 == 2: A("s_and_b32 s89, s63, 3")
    elif args.swp: A("s_add_u32 s89, s62, s63\ns_and_b32 s89, s89, 1")
    else: A("s_mov_b32 s89, 0")
NWF = 24 if args.cpf == 3 else 15

A("s_sub_u32 s39, s38, 4")
if args.lprio: A(f"s_setprio {args.lprio}")
A("v_lshrrev_b32 v10, 3, v1\nv_and_b32 v11, 7, v1\nv_lshrrev_b32 v12, 4, v1\nv_xor_b32 v13, v11, v12\nv_xor_b32 v14, 4, v13")
A("s_lshl_b32 s46, s60, 7\ns_lshl_b32 s47, s39, 5\ns_add_u32 s46, s46, s47\ns_mul_i32 s46, s46, 1280")
A("v_mul_u32_u24 v10, 1280, v10\nv_add_u32 v10, s46, v10\nv_lshlrev_b32 v13, 4, v13\nv_lshlrev_b32 v14, 4, v14")
A("v_add_u32 v2, v10, v13\nv_add_u32 v3, v10, v14")
A(f"v_add_u32 v4, {2*10240 - 2*1024}, v2\nv_add_u32 v5, {3*10240 - 3*1024}, v3\nv_add_u32 v3, {10240 - 1024}, v3")
A("s_mul_i32 s46, s61, 192\ns_mul_i32 s47, s39, 16*3072\ns_add_u32 s46, s46, s47")
for j in range(3):
    A(f"v_add_u32 v10, {64*j}, v1\nv_mul_u32_u24 v11, 171, v10\nv_lshrrev_b32 v11, 11, v11")
    A("v_mul_u32_u24 v12, 12, v11\nv_sub_u32 v12, v10, v12")
    A("v_mul_u32_u24 v13, 3072, v11\nv_add_u32 v13, s46, v13")
    if j: A(f"v_subrev_u32 v13, {1024*j}, v13")
    A(f"v_lshlrev_b32 v12, 4, v12\nv_and_b32 v14, 8, v11\nv_lshlrev_b32 v14, 2, v14\nv_xor_b32 v12, v12, v14\nv_add_u32 v{6+j}, v13, v12")
A("s_lshl_b32 s48, s39, 12")
A("s_mul_i32 s49, s39, 3072\ns_add_u32 s49, s49, 16384")
A("s_add_u32 s50, s49, 12288")
A("s_mul_i32 s55, s64, 10\ns_lshr_b32 s55, s55, 3")
if args.pro2:
    A("s_mov_b32 s18, 2621440\ns_mov_b32 s19, 0x20000\ns_mov_b32 s22, 1966080\ns_mov_b32 s23, 0x20000\ns_mov_b32 s26, 1966080\ns_mov_b32 s27, 0x20000")
else:
    A("s_waitcnt lgkmcnt(0)")
    srd(16, 4, 5, 2621440)
    srd(20, 6, 7, 1966080)
    srd(24, 8, 9, 1966080)
ops = []
def pre_k(c): return f"s_add_u32 s56, s55, {c}\ns_sub_u32 s57, s56, 10\ns_cmp_ge_u32 s56, 10\ns_cselect_b32 s56, s57, s56\n"
def xops(c, both):
    st = (c % 3) * STG
    r = []
    for j in range(4):
        p = (pre_k(c) + "s_lshl_b32 s51, s56, 7\n" + ("s_mul_i32 s52, s56, 64*3072\n" if both else "") + f"s_add_u32 m0, s48, {st}") if j == 0 else ""
        r.append((c, p, f"buffer_load_dwordx4 v{2+j}, s[16:19], s51 offen offset:{1024*j} lds"))
    return r
def wops(c, own):
    st = (c % 3) * STG
    r = []
    for j in range(3):
        p = ((pre_k(c) + "s_mul_i32 s52, s56, 64*3072\n" if own else "") + f"s_add_u32 m0, s49, {st}") if j == 0 else ""
        r.append((c, p, f"buffer_load_dwordx4 v{6+j}, s[20:23], s52 offen offset:{1024*j} lds"))
    for j in range(3):
        p = f"s_add_u32 m0, s50, {st}" if j == 0 else ""
        r.append((c, p, f"buffer_load_dwordx4 v{6+j}, s[24:27], s52 offen offset:{1024*j} lds"))
    return r
if args.xfirst == 1:
    ops = xops(0, True) + wops(0, False) + xops(1, False) + xops(2, False) + wops(1, True) + wops(2, True)
    c0 = 3
elif args.xfirst == 2:
    ops = xops(0, True) + wops(0, False) + xops(1, True) + wops(1, False)[:0] + xops(2, False) + wops(1, True) + wops(2, True)
    ops = wops(0, True) + xops(0, False) + xops(1, False) + xops(2, False) + wops(1, True) + wops(2, True)
    c0 = 3
else:
    c0 = 0
for c in range(c0, 10):
    ops += xops(c, True) + wops(c, False)
LASTOP = [max(i for i, o in enumerate(ops) if o[0] == c) for c in range(10)]
vm = []
def emit_op(op, thr):
    c, p, ins = op
    if p: A(p)
    if len(vm) >= thr:
        A(f"s_waitcnt vmcnt({thr-1})")
    elif p:
        A("s_waitcnt lgkmcnt(0)" if (args.pro2 and not vm) else "s_nop 0")
    A(ins); vm.append(("c", c))
def wait_for(tag):
    last = max(i for i, t in enumerate(vm) if t == tag)
    A(f"s_waitcnt vmcnt({len(vm) - 1 - last})")
for op in ops[:args.thr]:
    emit_op(op, args.thr)
srd(32, 36, 37, 0x10000000)
srd(72, 14, 15, 256)
if STAMPS: A("v_mov_b32 v40, 0")
stamp(0, 40)
common2()
if args.rot4: A("s_and_b32 s47, s39, 1\ns_add_u32 s89, s89, s47")
A("s_lshr_b32 s46, s39, 1\ns_mul_i32 s46, s46, 24\ns_and_b32 s47, s39, " + ("0" if args.rot4 else "1") + "\ns_lshl_b32 s47, s47, 1\ns_add_u32 s46, s46, s47\ns_mul_i32 s47, s63, 48\ns_add_u32 s46, s46, s47\ns_mul_i32 s46, s46, 5120")
A(f"s_add_u32 s46, s46, {WDP_OFF}\nv_lshlrev_b32 v16, 4, v1\nv_add_u32 v16, s46, v16\nv_add_u32 v17, 4096, v16\nv_add_u32 v18, 8192, v16")
A("s_mul_i32 s53, s39, 10240")
A(f"v_min_u32 v19, {NWF-1}, v1\nv_lshlrev_b32 v19, 7, v19\ns_lshl_b32 s46, s63, 12\ns_add_u32 s46, s46, {WFLAG_OFF}\nv_add_u32 v19, s46, v19\nv_mov_b32 v20, 0\nv_mov_b32 v25, 0")
A(f"s_lshl_b32 s46, s40, 5\ns_add_u32 s46, s46, s67\ns_lshl_b32 s46, s46, 7\ns_add_u32 s46, s46, {WFLAG_OFF}")
A("v_and_b32 v27, 31, v1\nv_lshlrev_b32 v27, 2, v27\nv_add_u32 v27, s46, v27")
A("s_cmp_lt_u32 s67, 32\ns_cbranch_scc1 L_w1\nv_mov_b32 v27, -1\nL_w1:\ns_cmp_eq_u32 s39, 0\ns_cbranch_scc1 L_w0\nv_mov_b32 v19, -1\nv_mov_b32 v27, -1\nL_w0:")
if args.warm:
    A("buffer_store_dword v25, v27, s[32:35], 0 offen sc1"); vm.append(("g", -1))
def touch():
    st = args.touch * 1024
    n_ws = (10 << 20) // st
    n_out = (2621440 + st - 1) // st
    tot = n_ws + n_out
    if tot <= 16:
        for k in range(n_ws):
            A(f"s_add_u32 s92, s36, {k*st + 4096}\ns_addc_u32 s93, s37, 0\ns_load_dword s94, s[92:93], 0")
        for k in range(n_out):
            A(f"s_add_u32 s92, s12, {k*st + 4096}\ns_addc_u32 s93, s13, 0\ns_load_dword s94, s[92:93], 0")
    else:
        A(f"s_lshr_b32 s95, s2, 3\ns_lshl_b32 s95, s95, 2\ns_add_u32 s95, s95, s39")
        for r in range((n_ws + 127) // 128):
            A(f"s_add_u32 s96, s95, {128*r}\ns_min_u32 s96, s96, {n_ws-1}\ns_mul_i32 s96, s96, {st}\ns_add_u32 s92, s36, s96\ns_addc_u32 s93, s37, 0\ns_load_dword s94, s[92:93], 0")
        A(f"s_min_u32 s96, s95, {n_out-1}\ns_mul_i32 s96, s96, {st}\ns_add_u32 s92, s12, s96\ns_addc_u32 s93, s13, 0\ns_load_dword s94, s[92:93], 0")
if args.touch and args.touchat < 0: touch()
if args.mwarm >= 0:
    srd(28, 10, 11, 1966080)
    A("s_lshr_b32 s44, s64, 2\ns_lshl_b32 s45, s43, 1\ns_add_u32 s45, s45, s44\ns_lshl_b32 s44, s40, 3\ns_add_u32 s45, s45, s44\ns_lshl_b32 s45, s45, 2\ns_add_u32 s45, s45, s39\ns_mul_i32 s45, s45, 60*128")
    A("v_lshlrev_b32 v28, 7, v1\nv_add_u32 v28, s45, v28\nv_cmp_gt_u32 vcc, 60, v1\ns_nop 1\nv_cndmask_b32 v28, -1, v28, vcc")
    A("s_cmp_eq_u32 s67, 255\ns_cbranch_scc1 L_mw\nv_mov_b32 v28, -1\nL_mw:")
WSLOT = [3, 1, 2, 0, 3, 1]
WFREE = [-1, 8, 9, 10, 12, 12]
wdn = [0]; checked = [False]; lastbar = [-1]
def issue_wd_ops(cnt):
    first = True
    for _ in range(cnt):
        g = wdn[0]; wdn[0] += 1
        jj, n = g // 10, g % 10
        assert lastbar[0] >= WFREE[jj] or (args.park and jj >= 4), (jj, lastbar[0])
        assert checked[0]
        st = WSLOT[jj] * STG
        if n == 0:
            if args.rot4: A(f"s_add_u32 s58, s89, {2*(jj&1)}\ns_and_b32 s58, s58, 3\ns_mul_i32 s58, s58, 10240\ns_add_u32 s58, s58, {(jj>>1)*40960}")
            else: A(f"s_xor_b32 s58, s89, {jj}\ns_mul_i32 s58, s58, 20480")
        if n % 4 == 0 or first:
            A(f"s_add_u32 m0, s53, {st + 4096*(n//4)}")
        first = False
        A(f"s_waitcnt vmcnt({(args.thr3 if (args.thr3 and lastbar[0] >= 12) else args.thr2) - 1})")
        if args.park and jj >= 4:
            r = 48 + 4*(g - 40)
            A(f"buffer_load_dwordx4 v[{r}:{r+3}], v{16 + n//4}, s[32:35], s58 offen offset:{1024*(n%4)} sc1"); vm.append(("r", g))
        else:
            A(f"buffer_load_dwordx4 v{16 + n//4}, s[32:35], s58 offen offset:{1024*(n%4)} sc1 lds"); vm.append(("w", jj))
WDAT = dict((int(x.split(":")[0]), int(x.split(":")[1])) for x in args.wdat.split(",") if x)
oi = args.thr
def m0_restore():
    if oi < 100 and not ops[oi][1]:
        k = oi
        while not ops[k][1]: k -= 1
        A(ops[k][1].split("\n")[-1])
for c in range(10):
    tgt = min(100, LASTOP[c] + 1 + args.thr)
    while tgt > 0 and ops[tgt-1][0] > max(c + 1, 2): tgt -= 1
    while oi < tgt:
        emit_op(ops[oi], args.thr); oi += 1
    if c in WDAT and c == 9:
        issue_wd_ops(WDAT[c])
    wait_for(("c", c))
    if c == args.mwarm:
        A("buffer_load_dword v29, v28, s[28:31], 0 offen"); vm.append(("m", 0))
    if c == args.chk - 1:
        A("buffer_load_dword v26, v19, s[32:35], 0 offen sc1"); vm.append(("f", 0))
    if c == args.chk:
        wait_for(("f", 0))
        A("s_cmp_lg_u32 s39, 0\ns_cbranch_scc1 L_wgo\ns_mov_b32 s66, 0")
        A("L_wchk:")
        A("v_cmp_ne_u32 vcc, s65, v26\ns_add_u32 s66, s66, 1\ns_nop 0")
        A(f"s_cmp_eq_u64 vcc, 0\ns_cbranch_scc1 L_wgo\ns_cmp_gt_u32 s66, {SPIN}\ns_cbranch_scc1 L_wgo\ns_sleep 2")
        A("buffer_load_dword v26, v19, s[32:35], 0 offen sc1\ns_waitcnt vmcnt(0)\ns_branch L_wchk")
        A("L_wgo:")
    if c in WDAT and c != 9:
        issue_wd_ops(WDAT[c]); m0_restore()
    A("s_barrier"); lastbar[0] = c
    if c == args.chk:
        checked[0] = True
    if args.touch and c == args.touchat: touch()
    if c == 2:
        A("s_load_dword s65, s[14:15], 0")
    if c == (CPS[2] + 1) // 2:
        A("s_cmp_lg_u32 s39, 0\ns_cbranch_scc1 L_nowf")
        A("s_waitcnt lgkmcnt(0)\ns_mov_b32 s66, 0\ns_cmp_lg_u32 s65, 0\ns_cbranch_scc1 L_wf")
        A("L_wfl:")
        A("buffer_load_dword v25, v20, s[72:75], 0 offen sc1\ns_waitcnt vmcnt(0)\nv_readfirstlane_b32 s65, v25\ns_add_u32 s66, s66, 1")
        A(f"s_cmp_gt_u32 s66, {SPIN}\ns_cbranch_scc1 L_wf\ns_cmp_eq_u32 s65, 0\ns_cbranch_scc1 L_wfl")
        A("L_wf:")
        A("v_mov_b32 v25, s65")
        A("L_nowf:")
        A("buffer_store_dword v25, v27, s[32:35], 0 offen sc1"); vm.append(("g", 0))
    if args.ser: stamp(c + 1, 40)
    elif c in (0, 4, 9): stamp({0: 1, 4: 2, 9: 3}[c], 40)
def lstamp(i):
    if not args.ser: stamp(i, 40)
if 10 in WDAT: issue_wd_ops(WDAT[10])
A("s_barrier"); lastbar[0] = 10
lstamp(7)
issue_wd_ops(args.n11 - wdn[0])
wait_for(("w", 1))
lstamp(4)
A("s_barrier")
issue_wd_ops(args.n12)
NCERT = args.ncert or min(4, wdn[0] // 10)
assert NCERT <= wdn[0] // 10
wait_for(("w", NCERT - 1))
A("s_barrier"); lastbar[0] = 12
lstamp(5)
if args.park:
    A(f"v_lshlrev_b32 v44, 4, v1\nv_add_u32 v44, s53, v44\nv_add_u32 v45, {3*STG}, v44\nv_add_u32 v44, {STG}, v44")
    issue_wd_ops(60 - wdn[0])
    for g in range(40, 60):
        wait_for(("r", g))
        r = 48 + 4*(g - 40)
        A(f"ds_write_b128 v{45 if g < 50 else 44}, v[{r}:{r+3}] offset:{1024*(g % 10)}")
    A("s_waitcnt vmcnt(0) lgkmcnt(0)")
else:
    issue_wd_ops(60 - wdn[0])
    A("s_waitcnt vmcnt(0)")
lstamp(6)
A("s_barrier")
store_stamps(40, 41, 1, "L_st1", 39, 0)
A("L_end:")
A("s_endpgm")

A("L_compute:")
if args.cprio: A(f"s_setprio {args.cprio}")
common2()
if args.cwarm:
    A("s_cmp_lg_u32 s38, 1\ns_cbranch_scc1 L_nocw")
    A("s_getpc_b64 s[92:93]\nL_pc:\ns_sub_u32 s92, s92, L_pc-" + KN + "\ns_subb_u32 s93, s93, 0")
    A(f"s_mul_i32 s94, s41, {args.cwarm}\nv_min_u32 v192, {args.cwarm-1}, v1\nv_add_u32 v192, s94, v192\nv_lshlrev_b32 v192, 7, v192\nv_min_u32 v192, L_codeend-{KN}-4, v192")
    A("global_load_dword v254, v192, s[92:93]")
    A("L_nocw:")
A("s_mov_b32 s59, s40")
A("s_and_b32 s40, s38, 1\ns_lshr_b32 s41, s38, 1")
VX = 2; VW = 6; VH = 12; FR = 16; ACC = 96; T = 192; VST = 15
PF, PP, PH, PT, PL, PO = 208, 209, 210, 212, 214, 215
A(f"v_and_b32 v{T}, 15, v1")
A(f"s_lshl_b32 s42, s40, 6\nv_add_u32 v{T}, s42, v{T}\nv_lshlrev_b32 v{T}, 7, v{T}")
A(f"v_lshrrev_b32 v{T+1}, 4, v1\nv_bfe_u32 v{T+2}, v1, 1, 3\nv_xor_b32 v{T+1}, v{T+1}, v{T+2}")
for ks in range(2):
    A(f"v_xor_b32 v{T+2}, {4*ks}, v{T+1}\nv_lshlrev_b32 v{T+2}, 4, v{T+2}\nv_add_u32 v{VX+ks}, v{T}, v{T+2}\nv_add_u32 v{VX+2+ks}, {2*STG}, v{VX+ks}")
A(f"v_bfe_u32 v{T}, v1, 4, 1\nv_lshrrev_b32 v{T+1}, 4, v1\nv_bfe_u32 v{T+2}, v1, 2, 2\nv_and_b32 v{T+3}, 3, v1")
A(f"v_lshlrev_b32 v{T+1}, 3, v{T+1}\nv_add_u32 v{T+1}, v{T+1}, v{T+2}\nv_mul_u32_u24 v{T+1}, 192, v{T+1}")
A(f"v_lshlrev_b32 v{T+3}, 3, v{T+3}\nv_add_u32 v{T+1}, v{T+1}, v{T+3}\nv_add_u32 v{T+1}, 16384, v{T+1}")
A("s_mul_i32 s42, s41, 3")
for t in range(3):
    A(f"s_add_u32 s43, s42, {t}\nv_xor_b32 v{T+2}, s43, v{T}\nv_lshlrev_b32 v{T+2}, 5, v{T+2}\nv_add_u32 v{VW+t}, v{T+1}, v{T+2}\nv_add_u32 v{VW+3+t}, {2*STG}, v{VW+t}")
A(f"v_lshrrev_b32 v{T}, 5, v1\nv_mul_u32_u24 v{T}, 49152, v{T}\nv_and_b32 v{T+1}, 31, v1\nv_lshlrev_b32 v{T+1}, 4, v{T+1}\nv_add_u32 v{VH}, v{T}, v{T+1}")
A("s_lshl_b32 s44, s60, 3\ns_lshl_b32 s45, s40, 2\ns_add_u32 s44, s44, s45\ns_mul_i32 s44, s44, 49152")
A("s_lshr_b32 s45, s61, 3\ns_mul_i32 s45, s45, 24\ns_and_b32 s46, s61, 7\ns_add_u32 s45, s45, s46\ns_lshl_b32 s45, s45, 10\ns_add_u32 s44, s44, s45\ns_lshl_b32 s45, s41, 9\ns_add_u32 s44, s44, s45")
for t in range(3):
    for mp in range(2):
        A(f"s_add_u32 s{76+2*t+mp}, s44, {8192*t + 98304*mp}")
A("v_mov_b32 v13, 0")
A("s_mov_b32 s82, 0xbfb8aa3b\ns_mov_b32 s83, 0xbfb8aa3b\ns_mov_b32 s84, 1.0\ns_mov_b32 s85, 1.0")
A("s_waitcnt lgkmcnt(0)")
srd(72, 14, 15, 256)
A("s_or_b32 s46, s2, s38\ns_cmp_lg_u32 s46, 0\ns_cbranch_scc1 L_nononce")
A("s_memrealtime s[46:47]\ns_waitcnt lgkmcnt(0)\ns_lshl_b32 s46, s46, 3\ns_or_b32 s46, s46, 4\nv_mov_b32 v14, s46")
A("buffer_store_dword v14, v13, s[72:75], 0 offen sc1")
A("L_nononce:")
srd(32, 36, 37, 0x10000000)
srd(68, 12, 13, 2621440)
srd(28, 10, 11, 1966080)
if STAMPS: A(f"v_mov_b32 v{VST}, 0")
stamp(0, VST)
A("s_lshl_b32 s46, s60, 1\ns_add_u32 s46, s46, s40\ns_lshl_b32 s46, s46, 5\ns_lshl_b32 s47, s61, 1\ns_add_u32 s46, s46, s47\ns_add_u32 s46, s46, s41")
A(f"s_lshl_b32 s46, s46, 9\ns_add_u32 s46, s46, {FLAG_OFF}\nv_and_b32 v{PF}, 31, v1\nv_lshlrev_b32 v{PF}, 2, v{PF}\nv_add_u32 v{PF}, s46, v{PF}")
if args.warm:
    A(f"v_lshlrev_b32 v{T}, 3, v1\nv_add_u32 v{T}, s46, v{T}\nv_mov_b32 v{T+2}, 0\nv_mov_b32 v{T+3}, 0")
    A(f"buffer_store_dwordx2 v[{T+2}:{T+3}], v{T}, s[32:35], 0 offen sc1")
A(f"s_lshl_b32 s46, s62, 14\ns_lshl_b32 s47, s41, 13\ns_add_u32 s46, s46, s47\ns_add_u32 s46, s46, {FLAG_OFF}")
A(f"v_and_b32 v{PP}, 15, v1\nv_lshlrev_b32 v{PP}, 9, v{PP}\nv_add_u32 v{PP}, s46, v{PP}")
A(f"v_lshlrev_b32 v{PL}, 4, v1")
A("s_lshl_b32 s46, s62, 2\ns_lshl_b32 s47, s40, 1\ns_add_u32 s46, s46, s47\ns_mul_i32 s46, s46, 48\ns_mul_i32 s47, s41, 24\ns_add_u32 s46, s46, s47\ns_lshl_b32 s46, s46, 10")
if args.tail2:
    A(f"s_mul_i32 s47, s41, 49152\ns_add_u32 s47, s47, s46\nv_add_u32 v{PH+1}, s47, v{PL}\ns_xor_b32 s47, s41, 1\ns_mul_i32 s47, s47, 49152\ns_add_u32 s47, s47, s46\nv_add_u32 v{PH}, s47, v{PL}")
else:
    A(f"v_add_u32 v{PH}, s46, v{PL}\nv_add_u32 v{PH+1}, 49152, v{PH}")
A(f"v_lshrrev_b32 v{T}, 5, v1\nv_lshlrev_b32 v{T}, 4, v{T}\nv_bfe_u32 v{T+1}, v1, 4, 1\nv_lshlrev_b32 v{T+1}, 2, v{T+1}\nv_add_u32 v{T}, v{T}, v{T+1}")
A(f"v_bfe_u32 v{T+1}, v1, 2, 2\nv_add_u32 v{T}, v{T}, v{T+1}\nv_mul_u32_u24 v{T}, 160, v{T}\nv_and_b32 v{T+1}, 3, v1\nv_lshlrev_b32 v{T+1}, 3, v{T+1}\nv_add_u32 v{T}, v{T}, v{T+1}")
A(f"s_mul_i32 s46, s41, 20480\nv_add_u32 v{PT}, s46, v{T}\nv_add_u32 v{PT+1}, {2*STG}, v{PT}")
A(f"v_and_b32 v{PO}, 15, v1\ns_lshl_b32 s46, s62, 6\ns_lshl_b32 s47, s40, 5\ns_add_u32 s46, s46, s47\ns_lshl_b32 s47, s41, 4\ns_add_u32 s46, s46, s47\nv_add_u32 v{PO}, s46, v{PO}\nv_mul_u32_u24 v{PO}, 1280, v{PO}")
A(f"v_lshrrev_b32 v{T}, 4, v1\nv_lshlrev_b32 v{T}, 3, v{T}\nv_add_u32 v{PO}, v{PO}, v{T}\ns_mul_i32 s46, s63, 160\nv_add_u32 v{PO}, s46, v{PO}")
NE = args.cpf
if args.cpf == 3:
    A("s_mul_i32 s46, s67, 12\ns_mul_i32 s47, s38, 3\ns_add_u32 s46, s46, s47")
    A("s_mul_i32 s47, s67, 6\ns_add_u32 s47, s47, 96\ns_lshl_b32 s48, s38, 1\ns_add_u32 s47, s47, s48")
    A("s_cmp_lt_u32 s38, 3\ns_cselect_b32 s54, 2, 0\ns_cmp_lt_u32 s67, 16\ns_cselect_b32 s48, s46, s47\ns_cselect_b32 s54, 3, s54")
    A("s_cmp_lt_u32 s67, 32\ns_cselect_b32 s54, s54, 0\ns_cselect_b32 s48, s48, 0")
else:
    A("s_lshl_b32 s48, s67, 4\ns_lshl_b32 s47, s38, 2\ns_add_u32 s48, s48, s47\ns_cmp_lt_u32 s67, 32\ns_cselect_b32 s54, 4, 0\ns_cselect_b32 s48, s48, 0")
A("s_lshl_b32 s46, s48, 6\ns_mul_i32 s49, s59, 160\ns_mov_b32 s50, 52429")
for e in range(NE):
    A(f"v_add_u32 v{T}, s46, v1")
    if e: A(f"v_add_u32 v{T}, {64*e}, v{T}")
    A(f"v_mul_lo_u32 v{T+1}, v{T}, s50\nv_lshrrev_b32 v{T+1}, 19, v{T+1}")
    A(f"v_mul_u32_u24 v{T+2}, 10, v{T+1}\nv_sub_u32 v{T+2}, v{T}, v{T+2}\nv_lshlrev_b32 v{T+2}, 4, v{T+2}")
    A(f"v_lshrrev_b32 v{T+3}, 5, v{T+1}\nv_subrev_u32 v{T+4}, 24, v{T+3}\nv_cmp_gt_u32 vcc, 24, v{T+3}\nv_mov_b32 v{T+5}, 768\ns_nop 0")
    A(f"v_cndmask_b32 v{T+3}, v{T+4}, v{T+3}, vcc\nv_cndmask_b32 v{T+5}, v{T+5}, v13, vcc")
    A(f"v_and_b32 v{T+4}, 7, v{T+3}\nv_mul_u32_u24 v{T+4}, 96, v{T+4}\nv_add_u32 v{T+5}, v{T+5}, v{T+4}")
    A(f"v_lshrrev_b32 v{T+4}, 3, v{T+3}\nv_lshlrev_b32 v{T+4}, 4, v{T+4}\nv_add_u32 v{T+5}, v{T+5}, v{T+4}")
    A(f"v_bfe_u32 v{T+4}, v{T+1}, 4, 1\nv_mul_u32_u24 v{T+4}, 48, v{T+4}\nv_add_u32 v{T+5}, v{T+5}, v{T+4}")
    A(f"v_and_b32 v{T+4}, 15, v{T+1}\nv_add_u32 v{T+5}, v{T+5}, v{T+4}")
    A(f"v_mul_u32_u24 v{T+5}, 1280, v{T+5}\nv_add_u32 v{249+e}, v{T+5}, v{T+2}")
A(f"s_mul_i32 s50, s59, 240\ns_add_u32 s50, s50, s48\ns_lshl_b32 s50, s50, 10\ns_add_u32 s50, s50, {WDP_OFF}")

def xreg(s, mi): return FR + 40*(s & 1) + 4*mi
def wreg(s, t, u): return FR + 40*(s & 1) + 16 + 4*(2*t + u)
def reads(s):
    c, ks = s >> 1, s & 1
    st = c % 3
    hi = 1 if st >= 2 else 0
    so = (st & 1) * STG
    r = []
    def rw(t, u):
        for rr in range(2):
            d = wreg(s, t, u) + 2*rr
            r.append(f"ds_read_b64_tr_b16 v[{d}:{d+1}], v{VW+3*hi+t} offset:{so + 6144*ks + 768*rr + 12288*u}")
    def rx(mi):
        d = xreg(s, mi)
        r.append(f"ds_read_b128 v[{d}:{d+3}], v{VX+2*hi+ks} offset:{so + 2048*mi}")
    rw(0, 0); rx(0); rx(1); rx(2); rx(3); rw(0, 1); rw(1, 0); rw(1, 1); rw(2, 0); rw(2, 1)
    return r
def mfma(s, mi, t, u):
    a = ACC + 4*((mi*3 + t)*2 + u)
    wa, xa = wreg(s, t, u), xreg(s, mi)
    c = "0" if s == 0 else f"v[{a}:{a+3}]"
    return f"v_mfma_f32_16x16x32_bf16 v[{a}:{a+3}], v[{wa}:{wa+3}], v[{xa}:{xa+3}], {c}"
def mfmas(s):
    if args.chain:
        import re
        base = [mfma(s, mi, t, u) for t in range(3) for u in range(2) for mi in range(4)]
        if args.chain >= 2:
            order = []
            for k in range(12):
                order.append(base[k]); order.append(base[12 + (k + 1) % 12])
            base = order
        r = []
        for k, x in enumerate(base):
            p = base[k & ~(3 if args.chain == 3 else 7 if args.chain == 4 else 1)]
            d = re.match(r"v_mfma_f32_16x16x32_bf16 (v\[\d+:\d+\])", p).group(1)
            if s & 1:
                lo = int(d[2:d.index(":")]); lo = ACC + ((lo - ACC + 48) % 96); d = f"v[{lo}:{lo+3}]"
            parts = x.split(", ")
            r.append(f"v_mfma_f32_16x16x32_bf16 {d}, {parts[1]}, {parts[2]}, " + ("0" if s < 2 and base[k] is p else d))
        return r
    if args.snake == 1:
        return [mfma(s, (mi if u == 0 else 3 - mi), t, u) for t in range(3) for u in range(2) for mi in range(4)]
    if args.snake == 2:
        tus = [(t, u) for t in range(3) for u in range(2)]
        return [mfma(s, mi, *(tus[k] if mi % 2 == 0 else tus[5 - k])) for mi in range(4) for k in range(6)]
    return [mfma(s, mi, t, u) for t in range(3) for u in range(2) for mi in range(4)]
def copy_ops(s):
    if s == CPS[0]:
        for e in range(NE):
            A(f"s_cmp_le_u32 s54, {e}\ns_cbranch_scc1 L_nocp1")
            A(f"buffer_load_dwordx4 v[{224+4*e}:{227+4*e}], v{249+e}, s[28:31], s49 offen")
        A("L_nocp1:")
    if s == CPS[1]:
        A("s_waitcnt vmcnt(0)")
        for e in range(NE):
            A(f"s_cmp_le_u32 s54, {e}\ns_cbranch_scc1 L_nocp2")
            A(f"buffer_store_dwordx4 v[{224+4*e}:{227+4*e}], v{PL}, s[32:35], s50 offen offset:{1024*e} sc1")
        A("L_nocp2:")
if args.ch1:
    X1Q = [192, 196, 200, 204, 216, 220, 240, 244]
    def xreg(s, mi):
        c, ks = s >> 1, s & 1
        return (64 + 16*ks + 4*mi) if (c & 1) else X1Q[4*ks + mi]
    def wreg(s, t, u): return 16 + 8*(2*t + u) + 4*(s & 1)
    def rd_w(c, g):
        t, u = g >> 1, g & 1
        st = c % 3; hi = 1 if st >= 2 else 0; so = (st & 1) * STG
        return [(("w", c, g), f"ds_read_b64_tr_b16 v[{wreg(2*c+ks,t,u)+2*rr}:{wreg(2*c+ks,t,u)+2*rr+1}], v{VW+3*hi+t} offset:{so + 6144*ks + 768*rr + 12288*u}") for ks in range(2) for rr in range(2)]
    def rd_x(c):
        st = c % 3; hi = 1 if st >= 2 else 0; so = (st & 1) * STG
        return [(("x", c), f"ds_read_b128 v[{xreg(2*c+ks,mi)}:{xreg(2*c+ks,mi)+3}], v{VX+2*hi+ks} offset:{so + 2048*mi}") for mi in range(4) for ks in range(2)]
    lq = []
    def lissue(r):
        A(r[1]); lq.append(r[0])
    def lwait(tags):
        last = max([i for i, t in enumerate(lq) if t in tags] + [-1])
        if last >= 0:
            A(f"s_waitcnt lgkmcnt({min(15, len(lq) - 1 - last)})")
            del lq[:last + 1]
    A("s_barrier")
    stamp(1, VST)
    for r in rd_w(0, 0) + rd_x(0) + rd_w(0, 1) + rd_w(0, 2): lissue(r)
    pend = rd_w(0, 3) + rd_w(0, 4) + rd_w(0, 5)
    for c in range(9):
        for g in range(6):
            t, u = g >> 1, g & 1
            if g == 3:
                assert not pend
                if 2*c + 1 == CPS[2]: A("s_waitcnt vmcnt(0)")
                A("s_waitcnt lgkmcnt(0)"); del lq[:]
                A("s_barrier")
                pend = rd_w(c + 1, 0) + rd_x(c + 1) + rd_w(c + 1, 1) + rd_w(c + 1, 2)
            lwait({("w", c, g), ("x", c)})
            for k in range(8):
                mi, ks = k >> 1, k & 1
                A(mfma(2*c + ks, mi, t, u))
                if pend: lissue(pend.pop(0))
                if g == 2 and k == 0: copy_ops(2*c)
                if g == 5 and k == 0: copy_ops(2*c + 1)
        assert not pend
        pend = rd_w(c + 1, 3) + rd_w(c + 1, 4) + rd_w(c + 1, 5)
else:
    A("s_barrier")
    stamp(1, VST)
    for r in reads(0):
        A(r)
    for s in range(18):
        m = mfmas(s)
        nx = reads(s + 1)
        A("s_waitcnt lgkmcnt(0)")
        i0 = 0
        if s & 1:
            for x in m[:4]: A(x)
            if s == CPS[2]: A("s_waitcnt vmcnt(0)")
            if args.cbar == 1 and s in (13, 17): stamp(11 if s == 13 else 13, VST)
            A("s_barrier")
            if args.cbar == 1 and s in (13, 17): stamp(12 if s == 13 else 14, VST)
            if args.cpos < 0: copy_ops(s)
            if s == 17:
                A("s_load_dword s65, s[14:15], 0")
            i0 = 4
        k = 0
        for i in range(i0, 24):
            A(m[i])
            if k < 16:
                A(nx[k]); k += 1
            if i == args.cpos: copy_ops(s)
    for r in reads(19):
        A(r)
units = [(t, mp) for t in range(3) for mp in range(2)]
def epi(k):
    t, mp = units[k]
    o = 224 + 4*k
    TT = T + 8*(k & 1)
    e = []
    ga = [ACC + 4*(((2*mp + (j >> 2))*3 + t)*2 + 0) + (j & 3) for j in range(8)]
    ua = [ACC + 4*(((2*mp + (j >> 2))*3 + t)*2 + 1) + (j & 3) for j in range(8)]
    for j in range(0, 8, 2): e.append(f"v_pk_mul_f32 v[{TT+j}:{TT+j+1}], v[{ga[j]}:{ga[j]+1}], s[82:83]")
    for j in range(8): e.append(f"v_exp_f32 v{TT+j}, v{TT+j}")
    for j in range(0, 8, 2): e.append(f"v_pk_add_f32 v[{TT+j}:{TT+j+1}], v[{TT+j}:{TT+j+1}], s[84:85]")
    for j in range(8): e.append(f"v_rcp_f32 v{TT+j}, v{TT+j}")
    for j in range(0, 8, 2): e.append(f"v_pk_mul_f32 v[{TT+j}:{TT+j+1}], v[{TT+j}:{TT+j+1}], v[{ua[j]}:{ua[j]+1}]")
    for j in range(4): e.append(f"v_cvt_pk_bf16_f32 v{o+j}, v{TT+2*j}, v{TT+2*j+1}")
    e.append("s_nop 1")
    e.append(f"v_permlane32_swap_b32 v{o}, v{o+2}")
    e.append(f"v_permlane32_swap_b32 v{o+1}, v{o+3}")
    e.append(f"buffer_store_dwordx4 v[{o}:{o+3}], v{VH}, s[32:35], s{76+2*t+mp} offen sc1")
    return e
if args.ch1:
    mstream = [mfma(s, 2*mp + mm, t, u) for (t, mp) in units for u in range(2) for mm in range(2) for s in (18, 19)]
    lwait({("w", 9, 0), ("w", 9, 1), ("x", 9)})
    for x in mstream[:8]:
        A(x)
        for _ in range(2):
            if pend: lissue(pend.pop(0))
    A("s_load_dword s65, s[14:15], 0")
    for x in mstream[8:12]: A(x)
    A("s_waitcnt lgkmcnt(0)")
    A("s_barrier")
    stamp(2, VST)
else:
    A("s_waitcnt lgkmcnt(0)")
    A("s_barrier")
    stamp(2, VST)
    mstream = [mfma(s, 2*mp + mm, t, u) for (t, mp) in units for s in (18, 19) for u in range(2) for mm in range(2)]
    for x in mstream[:8]:
        A(x)
A("s_mov_b32 s66, 0\ns_cmp_lg_u32 s65, 0\ns_cbranch_scc1 L_havenonce")
A("L_nloop:")
A("buffer_load_dword v14, v13, s[72:75], 0 offen sc1\ns_waitcnt vmcnt(0)\nv_readfirstlane_b32 s65, v14\ns_add_u32 s66, s66, 1")
A(f"s_cmp_gt_u32 s66, {SPIN}\ns_cbranch_scc1 L_havenonce\ns_cmp_eq_u32 s65, 0\ns_cbranch_scc1 L_nloop")
A("L_havenonce:")
A("s_mov_b32 s86, 0\ns_mov_b32 s87, 128\ns_mov_b32 s88, 256")
A("v_mov_b32 v2, s65")
for x in mstream[(12 if args.ch1 else 8):16]:
    A(x)
rem = mstream[16:]
cv = []
def cwait(tag):
    last = max(i for i, t in enumerate(cv) if t == tag)
    return len(cv) - 1 - last
def flag(stage):
    A(f"s_waitcnt vmcnt({cwait(('st', 2*stage + 1))})")
    A(f"buffer_store_dword v2, v{PF}, s[32:35], s{86+stage} offen sc1"); cv.append(("fl", stage))
for k in range(6):
    e = epi(k)
    ms = rem[8*k:8*k+8]
    pos = [1, 4, 7, 10, 13, 16, 19, 22]
    for i, x in enumerate(e):
        if ms and i in pos:
            A(ms[pos.index(i)])
        A(x)
    cv.append(("st", k))
    if k == args.f0at: flag(0)
stamp(3, VST)
flag(1)
A("s_barrier")
WD = 16
HRL = [176, 184, 192, 200, 6][:args.nh]
NH = len(HRL)
ACC2 = 216
def wdreg(i, n): return WD + 20*(i % 8) + 4*n
def wd_reads(i):
    jj, s = i >> 2, i & 3
    sl = WSLOT[jj]
    va = PT + 1 if sl >= 2 else PT
    so = (sl & 1) * STG
    r = []
    for n in range(5):
        for rr in range(2):
            d = wdreg(i, n) + 2*rr
            r.append(f"ds_read_b64_tr_b16 v[{d}:{d+1}], v{va} offset:{so + 5120*s + 32*n + 1280*rr}")
    return r
for i in range(8):
    if (args.p0early == 2 and i == 0) or (args.p0early == 3 and i == 4):
        flag(2)
        A(POLL(86)); cv.append(("p", 0))
    for r in wd_reads(i): A(r)
if args.p0early < 2: flag(2)
stamp(4, VST)
if args.p0early == 1: A(POLL(86)); cv.append(("p", 0))
A("s_waitcnt lgkmcnt(0)")
A("s_barrier")
stamp(5, VST)
def check(stage):
    A("s_mov_b32 s66, 0")
    A(f"L_chk{stage}:")
    A(f"v_cmp_ne_u32 vcc, s65, v5\ns_add_u32 s66, s66, 1\ns_nop 0")
    A(f"s_cmp_eq_u64 vcc, 0\ns_cbranch_scc1 L_go{stage}\ns_cmp_gt_u32 s66, {SPIN}\ns_cbranch_scc1 L_go{stage}\ns_sleep {args.sleep}")
    A(POLL(86+stage) + f"\ns_waitcnt vmcnt(0)\ns_branch L_chk{stage}")
    A(f"L_go{stage}:")
if not args.p0early: A(POLL(86)); cv.append(("p", 0))
A("s_waitcnt vmcnt(0)")
check(0)
stamp(6, VST)
def hreg(i, mm): return HRL[i % NH] + 4*mm
def h_loads(i):
    jj, s = i >> 2, i & 3
    if args.rot4:
        if i % 2 == 0: A(f"s_add_u32 s58, s89, {(i>>1)&3}\ns_and_b32 s58, s58, 3\ns_lshl_b32 s58, s58, 11\ns_add_u32 s58, s58, {(i>>3)*8192}")
        s = i & 1
    elif s == 0: A(f"s_xor_b32 s58, s89, {jj}\ns_lshl_b32 s58, s58, 12")
    for mm in range(2):
        A(f"buffer_load_dwordx4 v[{hreg(i,mm)}:{hreg(i,mm)+3}], v{PH+mm}, s[32:35], s58 offen offset:{1024*s} sc1"); cv.append(("h", i))
def poll(stage):
    A(POLL(86+stage)); cv.append(("p", len(cv)))
    return cv[-1]
for i in range(NH):
    h_loads(i)
if args.p1at < 0: ptag = poll(1)
if args.p1dual:
    A(f"buffer_load_dword v14, v{PP}, s[32:35], s87 offen sc1"); cv.append(("pa", 0))
if args.tail2:
    def p2mfma(i, n, mm):
        a = ACC2 + 4*(5*mm + n)
        c = "0" if i == 0 else f"v[{a}:{a+3}]"
        return f"v_mfma_f32_16x16x32_bf16 v[{a}:{a+3}], v[{wdreg(i,n)}:{wdreg(i,n)+3}], v[{hreg(i,mm)}:{hreg(i,mm)+3}], {c}"
    OF = (" " + args.outflag) if args.outflag else ""
    if args.ch2:
        free = []
        WQ = {(i, n): WD + 20*i + 4*n for i in range(8) for n in range(5)}
        HQ = {(i, mm): HRL[i] + 4*mm for i in range(NH) for mm in range(2)}
        def wdreg(i, n): return WQ[(i, n)]
        def hreg(i, mm): return HQ[(i, mm)]
        nxt_h = NH
        for p in range(12):
            i0, i1 = 2*p, 2*p + 1
            if i0 == 4*NCERT - 2:
                A("s_barrier")
            last = (p == 11)
            A(f"s_waitcnt vmcnt({cwait(('h', i1))})" + (" lgkmcnt(0)" if p >= 4 else ""))
            if p == 0: stamp(7, VST)
            if i0 <= args.p1at <= i1: ptag = poll(1)
            rd = []
            if 4 <= p + 1 < 12:
                for i in (i0 + 2, i1 + 2):
                    for n in range(5): WQ[(i, n)] = free.pop(0)
                    rd += wd_reads(i)
            if last:
                A("s_barrier")
                M = [p2mfma(i, n, 0) for n in range(5) for i in (22, 23)] + [p2mfma(i, n, 1) for n in range(5) for i in (22, 23)]
                for k, x in enumerate(M):
                    A(x)
                    if k in (10, 12, 14, 16, 18):
                        n = (k - 10) // 2
                        A(f"ds_write_b128 v3, v[{ACC2+4*n}:{ACC2+4*n+3}] offset:{1024*n}")
                break
            k = 0
            for n in range(5):
                for mm in range(2):
                    for i in (i0, i1):
                        A(p2mfma(i, n, mm))
                        for _ in range(2 if k < 8 else 1):
                            if rd: A(rd.pop(0))
                        k += 1
            for i in (i0, i1):
                free += [WQ[(i, n)] for n in range(5)] + [HQ[(i, mm)] for mm in range(2)]
            reserve = 10 if 4 <= p + 2 < 12 else 0
            while nxt_h < 24 and nxt_h < i1 + 1 + args.hla and len(free) - 2 >= reserve:
                if nxt_h % 8 == 0:
                    A(f"s_waitcnt vmcnt({cwait(ptag)})")
                    check(nxt_h // 8)
                HQ[(nxt_h, 0)] = free.pop(); HQ[(nxt_h, 1)] = free.pop()
                h_loads(nxt_h)
                if nxt_h == args.p2at: ptag = poll(2)
                nxt_h += 1
            if p == 10:
                A(f"s_mul_i32 s46, s38, 5120\nv_add_u32 v2, s46, v{PL}")
                A(f"s_xor_b32 s47, s38, 2\ns_mul_i32 s47, s47, 5120\nv_add_u32 v3, s47, v{PL}")
                A(f"v_bfe_u32 v4, v1, 4, 1\nv_mul_u32_u24 v4, 24, v4\nv_add_u32 v4, v4, v{PO}")
    else:
        HP = (0, 2)
        if args.hint:
            def h_one(i, mm):
                jj, s_ = i >> 2, i & 3
                if s_ == 0 and mm == 0: A(f"s_xor_b32 s58, s89, {jj}\ns_lshl_b32 s58, s58, 12")
                A(f"buffer_load_dwordx4 v[{hreg(i,mm)}:{hreg(i,mm)+3}], v{PH+mm}, s[32:35], s58 offen offset:{1024*s_} sc1"); cv.append(("h", i))
            for i in range(22):
                if i == 4*NCERT - 2:
                    A("s_barrier")
                lg = " lgkmcnt(10)" if 8 <= i else ""
                A(f"s_waitcnt vmcnt({cwait(('h', i))}){lg}")
                if i == 0: stamp(7, VST)
                rd = wd_reads(i + 2) if 8 <= i + 2 < 24 else []
                j = i - 1 + NH
                k = 0
                for n in range(5):
                    for mm in range(2):
                        A(p2mfma(i, n, mm))
                        if i >= 1 and j < 24:
                            if k == 0 and j % 8 == 0:
                                A(f"s_waitcnt vmcnt({cwait(ptag)})")
                                check(j // 8)
                            if k == HP[0]: h_one(j, 0)
                            if k == HP[1]: h_one(j, 1)
                            if k == HP[1] + 1 and j == args.p2at: ptag = poll(2)
                        if k == 4 and i == args.p1at: ptag = poll(1)
                        if rd and (k not in HP or args.hint == 1): A(rd.pop(0))
                        if rd and args.hint == 2 and k in (5, 7): A(rd.pop(0))
                        k += 1
                assert not rd
                if i == 20:
                    A(f"s_mul_i32 s46, s38, 5120\nv_add_u32 v2, s46, v{PL}")
                    A(f"s_xor_b32 s47, s38, 2\ns_mul_i32 s47, s47, 5120\nv_add_u32 v3, s47, v{PL}")
                    A(f"v_bfe_u32 v4, v1, 4, 1\nv_mul_u32_u24 v4, 24, v4\nv_add_u32 v4, v4, v{PO}")
        else:
            for i in range(22):
                if i == 4*NCERT - 2:
                    A("s_barrier")
                lg = " lgkmcnt(10)" if 8 <= i else ""
                A(f"s_waitcnt vmcnt({cwait(('h', i))}){lg}")
                if i == 0: stamp(7, VST)
                if args.cbar == 2 and i in (4, 8, 12, 16, 20): stamp(10 + i//4, VST)
                if i == args.p1at: ptag = poll(1)
                rd = wd_reads(i + 2) if 8 <= i + 2 < 24 else []
                k = 0
                for n in range(5):
                    for mm in range(2):
                        A(p2mfma(i, n, mm))
                        if k < len(rd):
                            A(rd[k]); k += 1
                j = i + NH
                if j < 24:
                    if j % 8 == 0:
                        if args.p1dual and j == 8:
                            A(f"s_waitcnt vmcnt({cwait(('pa', 0))})\nv_cmp_ne_u32 vcc, s65, v14\ns_nop 1\ns_cmp_eq_u64 vcc, 0\ns_cbranch_scc1 L_go1")
                        A(f"s_waitcnt vmcnt({cwait(ptag)})")
                        check(j // 8)
                    h_loads(j)
                    if j == args.p2at:
                        ptag = poll(2)
                if i == 20:
                    A(f"s_mul_i32 s46, s38, 5120\nv_add_u32 v2, s46, v{PL}")
                    A(f"s_xor_b32 s47, s38, 2\ns_mul_i32 s47, s47, 5120\nv_add_u32 v3, s47, v{PL}")
                    if args.wide:
                        A(f"v_bfe_u32 v4, v1, 4, 1\nv_mul_u32_u24 v4, 24, v4\nv_add_u32 v4, v4, v{PO}")
        A(f"s_waitcnt vmcnt({cwait(('h', 22))}) lgkmcnt(10)")
        for n in range(5): A(p2mfma(22, n, 0))
        A("s_waitcnt vmcnt(0) lgkmcnt(0)")
        A("s_barrier")
        M = [p2mfma(23, n, 0) for n in range(5)] + [p2mfma(22, n, 1) for n in range(5)] + [p2mfma(23, n, 1) for n in range(5)]
        for k, x in enumerate(M):
            A(x)
            if 9 <= k < 14:
                n = k - 9
                A(f"ds_write_b128 v3, v[{ACC2+4*n}:{ACC2+4*n+3}] offset:{1024*n}")
    stamp(8, VST)
    A("s_waitcnt lgkmcnt(0)\ns_barrier")
    for n in range(5):
        A(f"ds_read_b128 v[{16+4*n}:{19+4*n}], v2 offset:{1024*n}")
    for n in range(5):
        a = ACC2 + 4*(5 + n)
        A(f"s_waitcnt lgkmcnt({4-n})")
        for r in range(4):
            A(f"v_add_f32 v{16+4*n+r}, v{16+4*n+r}, v{a+r}")
        A(f"v_cvt_pk_bf16_f32 v{40+2*n}, v{16+4*n}, v{17+4*n}\nv_cvt_pk_bf16_f32 v{41+2*n}, v{18+4*n}, v{19+4*n}")
        if args.wide and n < 4:
            if n & 1:
                o = 40 + 2*(n - 1)
                A(f"s_nop 1\nv_permlane16_swap_b32 v{o}, v{o+2}\nv_permlane16_swap_b32 v{o+1}, v{o+3}")
                A(f"buffer_store_dwordx4 v[{o}:{o+3}], v4, s[68:71], 0 offen offset:{32*(n-1)}{OF}")
        else:
            A(f"buffer_store_dwordx2 v[{40+2*n}:{41+2*n}], v{PO}, s[68:71], 0 offen offset:{32*n}{OF}")
else:
    for i in range(24):
        if i == 4*NCERT - 2:
            A("s_barrier")
        lg = " lgkmcnt(10)" if 8 <= i < 23 else (" lgkmcnt(0)" if i == 23 else "")
        A(f"s_waitcnt vmcnt({cwait(('h', i))}){lg}")
        if i == 0: stamp(7, VST)
        if i == args.p1at: ptag = poll(1)
        if i == 23:
            A("s_barrier")
        rd = wd_reads(i + 2) if 8 <= i + 2 < 24 else []
        k = 0
        for n in range(5):
            for mm in range(2):
                a = ACC2 + 4*(5*mm + n)
                c = "0" if i == 0 else f"v[{a}:{a+3}]"
                A(f"v_mfma_f32_16x16x32_bf16 v[{a}:{a+3}], v[{wdreg(i,n)}:{wdreg(i,n)+3}], v[{hreg(i,mm)}:{hreg(i,mm)+3}], {c}")
                if k < len(rd):
                    A(rd[k]); k += 1
        j = i + NH
        if j < 24:
            if j % 8 == 0:
                A(f"s_waitcnt vmcnt({cwait(ptag)})")
                check(j // 8)
            h_loads(j)
            if j == 16 - NH:
                ptag = poll(2)
    stamp(8, VST)
    A(f"s_mul_i32 s46, s38, 5120\nv_add_u32 v10, s46, v{PL}")
    A(f"s_xor_b32 s47, s38, 2\ns_mul_i32 s47, s47, 5120\nv_add_u32 v11, s47, v{PL}")
    A("s_nop 4")
    A("s_cmp_eq_u32 s41, 0\ns_cbranch_scc0 L_kh1")
    OF = (" " + args.outflag) if args.outflag else ""
    for kh in range(2):
        if kh == 1: A("L_kh1:")
        snd = 1 - kh
        for n in range(5):
            a = ACC2 + 4*(5*snd + n)
            A(f"ds_write_b128 v11, v[{a}:{a+3}] offset:{1024*n}")
        A("s_waitcnt lgkmcnt(0)\ns_barrier")
        for n in range(5):
            A(f"ds_read_b128 v[{16+4*n}:{19+4*n}], v10 offset:{1024*n}")
        for n in range(5):
            a = ACC2 + 4*(5*kh + n)
            A(f"s_waitcnt lgkmcnt({4-n})")
            for r in range(4):
                A(f"v_add_f32 v{16+4*n+r}, v{16+4*n+r}, v{a+r}")
            A(f"v_cvt_pk_bf16_f32 v{40+2*n}, v{16+4*n}, v{17+4*n}\nv_cvt_pk_bf16_f32 v{41+2*n}, v{18+4*n}, v{19+4*n}")
            A(f"buffer_store_dwordx2 v[{40+2*n}:{41+2*n}], v{PO}, s[68:71], 0 offen offset:{32*n}{OF}")
        if kh == 0:
            A("s_branch L_fin")
A("L_fin:")
stamp(9, VST)
if STAMPS or PROBE:
    A("s_waitcnt vmcnt(0)")
stamp(10, VST)
if PROBE:
    A("s_memrealtime s[46:47]\ns_waitcnt lgkmcnt(0)\ns_sub_u32 s48, s94, s92\ns_min_u32 s48, s48, 10000\ns_add_u32 s48, s48, s46")
    A("L_pspin:\ns_memrealtime s[46:47]\ns_waitcnt lgkmcnt(0)\ns_sub_u32 s49, s48, s46\ns_cmp_gt_i32 s49, 0\ns_cbranch_scc1 L_pspin")
store_stamps(VST, 16, 0, "L_st0", 38, 0)
A("s_endpgm")
A("L_codeend:")

out.append('.section .rodata,"a"\n.p2align 6')
out.append(f""".amdhsa_kernel {KN}
  .amdhsa_next_free_vgpr 256
  .amdhsa_next_free_sgpr 100
  .amdhsa_accum_offset 256
  .amdhsa_group_segment_fixed_size 0
  .amdhsa_kernarg_size 56
  .amdhsa_user_sgpr_count 2
  .amdhsa_user_sgpr_kernarg_segment_ptr 1
  .amdhsa_system_sgpr_workgroup_id_x 1
.end_amdhsa_kernel""")
print("\n".join(out))
```
